```python
import torch

def _softmax(x, axis=-1):
    return torch.softmax(x, dim=axis)
def _gelu(x):
    return torch.nn.functional.gelu(x, approximate="tanh")
def _silu(x):
    return torch.nn.functional.silu(x)
def _sigmoid(x):
    return torch.sigmoid(x)
def _layernorm(x, axis=-1, eps=1e-5):
    m = x.mean(dim=axis, keepdim=True)
    v = x.var(dim=axis, keepdim=True, unbiased=False)
    return (x - m) / torch.sqrt(v + eps)
def _scatter_add(tgt, idx, src, axis=0):
    return tgt.clone().index_add_(axis, idx, src)
def _segment_sum(src, seg, n):
    out = torch.zeros((n,) + src.shape[1:], dtype=src.dtype)
    return out.index_add_(0, seg, src)
def _pad(x, pw):
    flat = tuple(v for pair in reversed(pw) for v in pair)
    return torch.nn.functional.pad(x, flat)

kernel_name = 'gated_mix__mha_block__spectral_fnet__prompt'

def setup_inputs():

    _w = (lambda a: (lambda t: t.to(torch.bfloat16) if t.is_floating_point() else t)(torch.as_tensor(a)))
    def _A_setup():
        B, S, D, H = 1, 2048, 640, 32
        return {
            "x": _w((lambda *s: torch.randn(*s, dtype=torch.bfloat16) * 0.05)(B, S, D)),
            "wqkv": _w((lambda *s: torch.randn(*s, dtype=torch.bfloat16) * 1.6)(D, 3 * D)),
            "wo": _w((lambda *s: torch.randn(*s, dtype=torch.bfloat16) * 1.6)(D, D)),
        }
    _A_in = _A_setup()

    def _B_setup():
        B, S, D = 1, 2048, 640
        ns = torch.arange(S)[:, None] * torch.arange(S)[None, :]
        nd = torch.arange(D)[:, None] * torch.arange(D)[None, :]
        Ws_re = torch.cos(-2.0 * torch.pi * ns / S).to(float)
        Ws_im = torch.sin(-2.0 * torch.pi * ns / S).to(float)
        Wd_re = torch.cos(-2.0 * torch.pi * nd / D).to(float)
        Wd_im = torch.sin(-2.0 * torch.pi * nd / D).to(float)
        return {
            "x": _w((lambda *s: torch.randn(*s, dtype=torch.bfloat16) * 0.05)(B, S, D)),
            "dft_seq_re": _w(Ws_re),
            "dft_seq_im": _w(Ws_im),
            "dft_hid_re": _w(Wd_re),
            "dft_hid_im": _w(Wd_im),
        }
    _B_in = _B_setup()

    return {
        "A_x": _A_in["x"],
        "A_wqkv": _A_in["wqkv"],
        "A_wo": _A_in["wo"],
        "B_x": _B_in["x"],
        "B_dft_seq_re": _B_in["dft_seq_re"],
        "B_dft_seq_im": _B_in["dft_seq_im"],
        "B_dft_hid_re": _B_in["dft_hid_re"],
        "B_dft_hid_im": _B_in["dft_hid_im"],
        "gate_w": _w((lambda *s: torch.randn(*s, dtype=torch.bfloat16) * 0.05)(640) * 16.0),
    }

def reference(A_x, A_wqkv, A_wo, B_x, B_dft_seq_re, B_dft_seq_im, B_dft_hid_re, B_dft_hid_im, gate_w):
    def _A_ref(x, wqkv, wo):
        B, S, D = x.shape
        H = 32
        Dh = D // H
        qkv = (lambda x, *d: x.permute(*d))((x @ wqkv).reshape(B, S, 3, H, Dh), 2, 0, 3, 1, 4)
        q, k, v = qkv[0], qkv[1], qkv[2]
        scores = torch.einsum("bhqd,bhkd->bhqk", q, k) * (Dh ** -0.5)
        p = _softmax(scores, axis=-1)
        o = torch.einsum("bhqk,bhkd->bhqd", p, v)
        return (lambda x, *d: x.permute(*d))(o, 0, 2, 1, 3).reshape(B, S, D) @ wo

    def _B_ref(x, dft_seq_re, dft_seq_im, dft_hid_re, dft_hid_im):
        a = torch.einsum("bsd,ed->bse", x, dft_hid_re)
        b = torch.einsum("bsd,ed->bse", x, dft_hid_im)
        y = torch.einsum("ts,bse->bte", dft_seq_re, a) - torch.einsum("ts,bse->bte", dft_seq_im, b)
        return y

    x = A_x
    g = _sigmoid((x * gate_w).sum(-1, keepdims=True))
    a = _A_ref(x, A_wqkv, A_wo)
    b = _B_ref(x, B_dft_seq_re, B_dft_seq_im, B_dft_hid_re, B_dft_hid_im)
    return g * a + (1 - g) * b
```

```python
import math

class Asm:
    def __init__(self):
        self.lines = []
    def __call__(self, s):
        for l in s.strip("\n").split("\n"):
            l = l.strip()
            if not l:
                continue
            if l.endswith(":") and " " not in l:
                self.lines.append(l)
            else:
                self.lines.append("    " + l)
    def label(self, l):
        self.lines.append(l + ":")
    def text(self):
        return "\n".join(self.lines) + "\n"

def vr(a, n=None):
    if n is None or n == 1:
        return f"v{a}"
    return f"v[{a}:{a+n-1}]"
def sr(a, n=None):
    if n is None or n == 1:
        return f"s{a}"
    return f"s[{a}:{a+n-1}]"
def ar(a, n=None):
    if n is None or n == 1:
        return f"a{a}"
    return f"a[{a}:{a+n-1}]"

def f32bits(x):
    import struct
    return struct.unpack("<I", struct.pack("<f", x))[0]

S, D, H, DH = 2048, 640, 32, 20
WS_Q   = 0
WS_KV  = WS_Q + 32*16*5120
WS_AE  = WS_KV + 32*16*10240
WS_BO  = WS_AE + 11*65536
WS_A1024 = WS_BO + 11*65536
WS_G   = WS_A1024 + 2048
YPITCH = 352*4
WS_YM  = WS_G + 8192
WS_YP  = WS_YM + 1088*YPITCH
WS_O   = WS_YP + 1088*YPITCH
WS_WO  = WS_O + 128*20480
WS_END = WS_WO + 40*20480
WS_PROF = 0x1000000
WS_SIZE = 268435456
QSCALE = (DH ** -0.5) * math.log2(math.e)

def kernel_desc(name, vgpr, sgpr=96, accum=None):
    if accum is None:
        accum = min(256, (vgpr + 3)//4*4)
    return f""".amdhsa_kernel {name}
  .amdhsa_next_free_vgpr {vgpr}
  .amdhsa_next_free_sgpr {sgpr}
  .amdhsa_accum_offset {accum}
  .amdhsa_group_segment_fixed_size 0
  .amdhsa_kernarg_size 96
  .amdhsa_user_sgpr_count 2
  .amdhsa_user_sgpr_kernarg_segment_ptr 1
  .amdhsa_system_sgpr_workgroup_id_x 1
.end_amdhsa_kernel
"""
if __name__ == "__main__":
    for k, v in list(globals().items()):
        if k.startswith("WS_"): print(k, v, hex(v))
```

```python
from common import *

STAGE = 36864
NST = 4
K1_LDS = STAGE * NST

def gen_k1(prof=False, nocomp=False, noload=False):
    a = Asm()
    def stamp(i):
        if prof:
            a(f"s_memtime s[{60+2*i}:{61+2*i}]")
    def dump(n):
        if prof:
            a(f"""
            s_waitcnt vmcnt(0) lgkmcnt(0)
            s_memtime s[{60+2*n}:{61+2*n}]
            s_memrealtime s[82:83]
            s_mov_b64 exec, 1
            s_lshl_b32 s3, s2, 3
            s_add_u32 s3, s3, s59
            s_lshl_b32 s3, s3, 6
            s_add_u32 s3, s3, {WS_PROF}
            v_mov_b32 v1, s3
            s_mov_b32 s28, s12
            s_mov_b32 s29, s13
            s_mov_b32 s30, {WS_SIZE}
            s_mov_b32 s31, 0x20000
            s_waitcnt lgkmcnt(0)
            """)
            for i in range(n+1):
                a(f"v_mov_b32 v2, s{60+2*i}")
                a(f"buffer_store_dword v2, v1, s[28:31], 0 offen offset:{4*i}")
            a("v_mov_b32 v2, s80")
            a("buffer_store_dword v2, v1, s[28:31], 0 offen offset:56")
            a("v_mov_b32 v2, s82")
            a("buffer_store_dword v2, v1, s[28:31], 0 offen offset:60")

    ACC = 128
    def acc(s, t): return ACC + (s*5 + t)*4
    SETX = [32, 68]; SETW = [48, 84]
    VXA = 104; VWA = 106
    BXA = 111; BWA = 113
    VPAT = 118
    a(f"""
    s_cmp_ge_u32 s2, 256
    s_cbranch_scc1 K1_end
    s_load_dwordx4 s[4:7], s[0:1], 0
    s_load_dwordx4 s[8:11], s[0:1], 48
    s_load_dwordx2 s[12:13], s[0:1], 88
    v_lshrrev_b32 v1, 6, v0
    v_and_b32 v0, 63, v0
    s_and_b32 s18, s2, 7
    s_lshr_b32 s19, s2, 3
    v_readfirstlane_b32 s16, v1
    s_and_b32 s14, s18, 1
    s_lshl_b32 s14, s14, 3
    s_and_b32 s3, s19, 7
    s_add_u32 s14, s14, s3
    s_lshr_b32 s17, s18, 1
    s_lshl_b32 s15, s17, 2
    s_lshr_b32 s3, s19, 3
    s_add_u32 s15, s15, s3
    """)
    if prof: a("s_mov_b32 s59, s16"); a("s_memrealtime s[80:81]")
    stamp(0)
    a(f"""
    s_cmp_ge_u32 s16, 4
    s_cbranch_scc0 K1_compute
    """)
    VX = 8; VW = 12
    a(f"""
    s_sub_u32 s16, s16, 4
    s_mov_b32 s34, 8
    s_mov_b32 s35, 16
    s_mov_b32 s36, 4
    s_cmp_eq_u32 s17, 2
    s_cselect_b32 s34, 16, s34
    s_cselect_b32 s35, 8, s35
    s_cmp_eq_u32 s17, 3
    s_cselect_b32 s34, 16, s34
    s_cselect_b32 s35, 4, s35
    s_cselect_b32 s36, 8, s36
    s_add_u32 s37, s34, s35
    v_lshrrev_b32 v1, 3, v0
    v_and_b32 v2, 3, v1
    v_lshrrev_b32 v3, 5, v0
    v_mad_u32_u24 v4, v3, s36, v2
    v_and_b32 v5, 7, v0
    v_xor_b32 v5, v5, v1
    s_lshl_b32 s38, s14, 6
    s_lshr_b32 s3, s16, 1
    s_lshl_b32 s3, s3, 5
    s_add_u32 s38, s38, s3
    s_sub_u32 s39, 2048, s38
    s_and_b32 s3, s16, 1
    s_cmp_eq_u32 s3, 1
    s_cselect_b32 s38, s39, s38
    s_mov_b32 s40, 1280
    s_cselect_b32 s40, -1280, s40
    s_mul_i32 s38, s38, 1280
    v_mul_i32_i24 v4, s40, v4
    v_lshl_add_u32 v4, v5, 4, v4
    s_mul_i32 s34, s34, s40
    s_mul_i32 s35, s35, s40
    s_mul_i32 s37, s37, s40
    s_add_u32 s34, s34, s38
    s_add_u32 s35, s35, s38
    s_add_u32 s37, s37, s38
    v_add_u32 v{VX}, s38, v4
    v_add_u32 v{VX+1}, s34, v4
    v_add_u32 v{VX+2}, s35, v4
    v_add_u32 v{VX+3}, s37, v4
    v_subrev_u32 v6, {1024*1280}, v{VX}
    v_cmp_le_u32 vcc, {2048*1280}, v{VX}
    s_waitcnt lgkmcnt(0)
    s_mov_b32 s20, s4
    s_mov_b32 s21, s5
    v_cndmask_b32 v{VX}, v{VX}, v6, vcc
    s_mov_b32 s22, {S*D*2}
    s_mov_b32 s23, 0x20000
    s_cmp_ge_u32 s15, 14
    s_cselect_b64 s[24:25], s[10:11], s[8:9]
    s_cmp_lt_u32 s15, 12
    s_cselect_b64 s[24:25], s[6:7], s[24:25]
    s_mov_b32 s26, {D*D*2}
    s_cselect_b32 s26, {D*3*D*2}, s26
    s_mov_b32 s27, 0x20000
    s_mov_b32 s32, 1280
    s_cselect_b32 s32, 3840, s32
    s_and_b32 s3, s15, 1
    s_cselect_b32 s3, s15, s3
    """)
    a.lines.pop(); a.lines.pop()
    a(f"""
    s_and_b32 s33, s15, 1
    s_cmp_lt_u32 s15, 12
    s_cselect_b32 s33, s15, s33
    s_mul_i32 s33, s33, 320
    s_lshl_b32 s44, s32, 6
    s_lshl_b32 s41, s16, 12
    s_mul_i32 s42, s16, 5120
    s_add_u32 s42, s42, 16384
    s_mul_i32 s3, s16, 320
    v_add_u32 v1, s3, v0
    """)
    for jj in range(5):
        a(f"""
        v_add_u32 v2, {64*jj}, v1
        v_mul_u32_u24 v3, 3277, v2
        v_lshrrev_b32 v3, 16, v3
        v_mul_u32_u24 v4, 20, v3
        v_sub_u32 v4, v2, v4
        v_lshrrev_b32 v5, 2, v3
        v_and_b32 v5, 2, v5
        v_xor_b32 v4, v4, v5
        v_lshl_add_u32 v4, v4, 4, s33
        v_mad_u32_u24 v{VW+jj}, v3, s32, v4
        """)
    stamp(1)
    a(f"""
    s_mov_b32 s45, 0
    s_mov_b32 s46, 0
    s_mov_b32 s47, 0
    s_mov_b32 s43, 0
    K1_ld:
    s_add_u32 s50, s47, s41
    s_add_u32 s51, s47, s42
    """)
    for j in range(4):
        a(f"""
        s_add_u32 m0, s50, {j*1024}
        s_nop 0
        {"s_nop 0" if noload else f"buffer_load_dwordx4 v{VX+j}, s[20:23], s45 offen lds"}
        """)
    for jj in range(5):
        a(f"""
        s_add_u32 m0, s51, {jj*1024}
        s_nop 0
        {"s_nop 0" if noload else f"buffer_load_dwordx4 v{VW+jj}, s[24:27], s46 offen lds"}
        """)
    a(f"""
    s_add_u32 s45, s45, 128
    s_add_u32 s46, s46, s44
    s_add_u32 s47, s47, {STAGE}
    s_cmp_eq_u32 s47, {STAGE*NST}
    s_cselect_b32 s47, 0, s47
    s_add_u32 s43, s43, 1
    s_cmp_lt_u32 s43, 3
    s_cbranch_scc1 K1_ld
    s_waitcnt vmcnt(18)
    s_barrier
    s_cmp_lt_u32 s43, 10
    s_cbranch_scc1 K1_ld
    s_waitcnt vmcnt(9)
    s_barrier
    s_waitcnt vmcnt(0)
    s_barrier
    """)
    dump(2)
    a("s_endpgm")
    a(f"""
    K1_compute:
    s_lshr_b32 s18, s16, 1
    s_and_b32 s19, s16, 1
    v_and_b32 v1, 15, v0
    v_lshrrev_b32 v2, 4, v0
    v_and_b32 v3, 7, v0
    v_xor_b32 v3, v3, v2
    s_lshl_b32 s3, s18, 13
    v_lshlrev_b32 v4, 7, v1
    v_add_u32 v4, s3, v4
    v_lshl_add_u32 v{BXA}, v3, 4, v4
    v_xor_b32 v{BXA+1}, 64, v{BXA}
    v_bfe_u32 v5, v0, 2, 2
    v_and_b32 v6, 3, v0
    v_lshl_add_u32 v5, v2, 3, v5
    v_mul_u32_u24 v5, 320, v5
    v_add_u32 v5, 16384, v5
    s_mov_b32 s34, 8
    s_mov_b32 s35, 32
    s_cmp_lt_u32 s17, 2
    s_cselect_b32 s34, 40, s34
    s_cselect_b32 s35, 8, s35
    s_mul_i32 s36, s19, 160
    v_mul_u32_u24 v6, s34, v6
    v_add_u32 v6, s36, v6
    v_and_b32 v7, 1, v2
    v_lshlrev_b32 v7, 5, v7
    """)
    for t in range(5):
        a(f"""
        v_xor_b32 v8, v6, v7
        v_add_u32 v{BWA+t}, v5, v8
        """)
        if t < 4:
            a(f"v_add_u32 v6, s35, v6")
    a(f"""
    s_mov_b32 s48, 0
    s_mov_b32 s49, 0
    s_lshl_b32 s3, s15, 1
    s_add_u32 s3, s3, s19
    s_cmp_eq_u32 s3, 28
    s_cselect_b32 s48, 0x00010001, s48
    s_cselect_b32 s49, 0x00010001, s49
    v_mov_b32 v{VPAT}, 0xbf803f80
    """)
    for i in range(80):
        a(f"v_mov_b32 v{ACC+i}, 0")
    for i in range(7):
        a(f"v_mov_b32 v{VXA+i}, v{BXA+i}")
    a(f"""
    s_waitcnt lgkmcnt(0)
    s_mov_b32 s28, s12
    s_mov_b32 s29, s13
    s_mov_b32 s30, {WS_SIZE}
    s_mov_b32 s31, 0x20000
    s_mov_b32 s45, 0
    s_mov_b32 s46, 0
    """)
    stamp(1)
    a("s_barrier")
    stamp(2)
    def reads(st, ks):
        r = []
        for s in range(4):
            r.append(f"ds_read_b128 {vr(SETX[st]+4*s,4)}, v{VXA+ks} offset:{2048*s}")
        for t in (1,2,3,4,0):
            for hf in range(2):
                r.append(f"ds_read_b64_tr_b16 {vr(SETW[st]+4*t+2*hf,2)}, v{VWA+t} offset:{ks*10240+hf*1280}")
        return r
    for l in reads(0, 0): a(l)
    a(f"""
    s_cmp_lt_u32 s17, 2
    s_cbranch_scc0 K1_B_vf
    s_branch K1_B_qk
    """)
    def mfmas(st, qk):
        r = []
        for t in (1,2,3,4,0):
            for s in range(4):
                x = vr(SETX[st]+4*s,4); w = vr(SETW[st]+4*t,4); d = vr(acc(s,t),4)
                if qk: r.append(f"v_mfma_f32_16x16x32_bf16 {d}, {w}, {x}, {d}")
                else:  r.append(f"v_mfma_f32_16x16x32_bf16 {d}, {x}, {w}, {d}")
        return r
    def patch(st):
        return [f"v_cndmask_b32 v{SETW[st]+i}, v{SETW[st]+i}, v{VPAT}, s[48:49]" for i in range(4)]
    def inter(m, others):
        if nocomp: return []
        out = []
        o = list(others)
        for x in m:
            out.append(x)
            if o: out.append(o.pop(0))
        out += o
        return out
    for qk in (True, False):
        sfx = "qk" if qk else "vf"
        a(f"""
        K1_loop_{sfx}:
        s_waitcnt lgkmcnt(0)
        s_barrier
        s_add_u32 s45, s45, {STAGE}
        s_cmp_eq_u32 s45, {STAGE*NST}
        s_cselect_b32 s45, 0, s45
        """)
        upd = [f"v_add_u32 v{VXA+i}, s45, v{BXA+i}" for i in range(7)]
        for l in upd: a(l)
        oth = reads(0, 0) + ([] if qk else patch(1))
        oth = ([] if qk else patch(1)) + reads(0, 0)
        for l in inter(mfmas(1, qk), oth): a(l)
        a(f"""
        s_cmp_eq_u32 s46, 10
        s_cbranch_scc1 K1_done
        K1_B_{sfx}:
        s_waitcnt lgkmcnt(0)
        """)
        oth = ([] if qk else patch(0)) + reads(1, 1)
        for l in inter(mfmas(0, qk), oth): a(l)
        a(f"""
        s_add_u32 s46, s46, 1
        s_branch K1_loop_{sfx}
        """)
    a("K1_done:")
    stamp(3)
    a(f"""
    s_waitcnt lgkmcnt(0)
    v_and_b32 v1, 15, v0
    v_lshrrev_b32 v2, 4, v0
    s_cmp_eq_u32 s17, 2
    s_cbranch_scc1 K1_epV
    s_cmp_eq_u32 s17, 3
    s_cbranch_scc1 K1_epF
    """)
    TQ = [32, 36, 40, 44, 48, 52, 56, 60, 64, 68]
    a(f"""
    s_mov_b32 s34, 81920
    s_mov_b32 s35, 5120
    s_mov_b32 s36, {WS_Q}
    s_cmp_eq_u32 s17, 1
    s_cselect_b32 s34, 163840, s34
    s_cselect_b32 s35, 10240, s35
    s_cselect_b32 s36, {WS_KV}, s36
    s_cbranch_scc1 K1_noscale
    s_mov_b32 s38, {f32bits(QSCALE)}
    s_mov_b32 s39, {f32bits(QSCALE)}
    """)
    for i in range(40):
        a(f"v_pk_mul_f32 {vr(ACC+2*i,2)}, {vr(ACC+2*i,2)}, s[38:39]")
    a(f"""
    K1_noscale:
    s_and_b32 s3, s15, 3
    s_lshl_b32 s3, s3, 1
    s_add_u32 s3, s3, s19
    s_lshl_b32 s3, s3, 2
    s_mul_i32 s3, s3, s34
    s_add_u32 s36, s36, s3
    s_mul_i32 s3, s14, s35
    s_add_u32 s36, s36, s3
    s_lshl_b32 s3, s18, 11
    s_add_u32 s37, s36, s3
    s_lshl_b32 s3, s18, 9
    s_add_u32 s38, s36, s3
    s_add_u32 s38, s38, 4096
    v_mul_lo_u32 v3, v2, s34
    v_lshl_add_u32 v3, v1, 4, v3
    """)
    qi = 0
    for s in range(4):
        for ch in range(2):
            q = TQ[qi]; qi += 1
            for k in range(2):
                t = 2*ch + k
                a(f"v_cvt_pk_bf16_f32 v{q+2*k}, v{acc(s,t)}, v{acc(s,t)+1}")
                a(f"v_cvt_pk_bf16_f32 v{q+2*k+1}, v{acc(s,t)+2}, v{acc(s,t)+3}")
            a(f"buffer_store_dwordx4 {vr(q,4)}, v3, s[28:31], s37 offen offset:{(s//2)*1024 + ch*512 + (s%2)*256}")
    for e in range(2):
        q = TQ[qi]; qi += 1
        for k in range(2):
            s = e + 2*k
            a(f"v_cvt_pk_bf16_f32 v{q+2*k}, v{acc(s,4)}, v{acc(s,4)+1}")
            a(f"v_cvt_pk_bf16_f32 v{q+2*k+1}, v{acc(s,4)+2}, v{acc(s,4)+3}")
        a(f"buffer_store_dwordx4 {vr(q,4)}, v3, s[28:31], s38 offen offset:{e*256}")
    stamp(4); dump(5)
    a("s_endpgm")
    a(f"""
    K1_epV:
    s_and_b32 s3, s15, 3
    s_lshl_b32 s3, s3, 1
    s_add_u32 s3, s3, s19
    s_mul_i32 s36, s3, {4*163840}
    s_mul_i32 s3, s14, 10240
    s_add_u32 s36, s36, s3
    s_mul_i32 s3, s18, 2560
    s_add_u32 s36, s36, s3
    s_add_u32 s36, s36, {WS_KV + 5120}
    s_mov_b32 s34, {163840 - 20*16}
    v_mul_u32_u24 v3, 320, v2
    """)
    qi = 0
    for t in range(5):
        a(f"""
        v_add_u32 v4, {16*t}, v1
        v_mul_u32_u24 v5, 3277, v4
        v_lshrrev_b32 v5, 16, v5
        v_lshl_add_u32 v4, v4, 4, v3
        v_mul_lo_u32 v5, v5, s34
        v_add_u32 v{8+t}, v4, v5
        """)
        for tp in range(2):
            q = TQ[qi]; qi += 1
            for k in range(2):
                s = 2*tp + k
                a(f"v_cvt_pk_bf16_f32 v{q+2*k}, v{acc(s,t)}, v{acc(s,t)+1}")
                a(f"v_cvt_pk_bf16_f32 v{q+2*k+1}, v{acc(s,t)+2}, v{acc(s,t)+3}")
            a(f"buffer_store_dwordx4 {vr(q,4)}, v{8+t}, s[28:31], s36 offen offset:{tp*1280}")
    stamp(4); dump(5)
    a("s_endpgm")
    a(f"""
    K1_epF:
    s_and_b32 s3, s15, 1
    s_lshl_b32 s3, s3, 1
    s_add_u32 s3, s3, s19
    s_mul_i32 s34, s3, 80
    s_lshl_b32 s36, s14, 12
    s_lshl_b32 s3, s18, 9
    s_add_u32 s36, s36, s3
    s_add_u32 s36, s36, {WS_AE}
    s_mov_b32 s37, 1.0
    s_mov_b32 s38, 0
    s_cmp_ge_u32 s15, 14
    s_cselect_b32 s37, -1.0, s37
    s_cselect_b32 s38, {WS_BO - WS_AE}, s38
    s_add_u32 s3, s14, s18
    s_cmp_eq_u32 s3, 0
    s_cselect_b32 s40, 0xffff, 0
    s_mov_b32 s41, 0
    v_lshlrev_b32 v3, 10, v2
    v_add_u32 v3, s38, v3
    v_mov_b32 v4, s37
    v_mov_b32 v5, 1.0
    v_cndmask_b32 v5, v4, v5, s[48:49]
    v_cndmask_b32 v6, v4, 0, s[40:41]
    v_cndmask_b32 v7, v5, 0, s[40:41]
    v_add_u32 v13, s34, v1
    """)
    qi = 0
    for t in range(5):
        a(f"""
        v_add_u32 v14, {16*t}, v13
        v_lshrrev_b32 v15, 5, v14
        v_and_b32 v14, 31, v14
        v_lshl_add_u32 v14, v14, 4, v3
        v_lshl_add_u32 v{8+t}, v15, 16, v14
        """)
        if t == 0:
            a(f"""
            v_lshlrev_b32 v14, 10, v2
            v_add_u32 v14, {10*65536}, v14
            v_cndmask_b32 v8, v8, v14, s[48:49]
            """)
        q = TQ[qi]; qi += 1
        F = [72+i for i in range(8)]
        for sp in range(2):
            for r in range(4):
                sp_r0 = (sp == 0 and r == 0)
                mreg = (7 if sp_r0 else 5) if t == 0 else (6 if sp_r0 else 4)
                a(f"v_fma_f32 v{F[4*sp+r]}, v{acc(sp+2,t)+r}, v{mreg}, v{acc(sp,t)+r}")
        for k in range(4):
            a(f"v_cvt_pk_bf16_f32 v{q+k}, v{F[2*k]}, v{F[2*k+1]}")
        a(f"buffer_store_dwordx4 {vr(q,4)}, v{8+t}, s[28:31], s36 offen")
    stamp(4); dump(5)
    if prof: a("s_mov_b64 exec, -1")
    a(f"""
    s_cmp_eq_u32 s40, 0
    s_cbranch_scc1 K1_end
    v_lshlrev_b32 v14, 2, v13
    s_mov_b32 s36, {WS_A1024}
    s_cmp_ge_u32 s15, 14
    s_cbranch_scc1 K1_epF2
    s_mov_b64 exec, 0xffff
    """)
    for t in range(5):
        a(f"buffer_store_dword v{acc(2,t)}, v14, s[28:31], s36 offen offset:{64*t}")
    a(f"""
    s_endpgm
    K1_epF2:
    s_cmp_eq_u32 s48, 0
    s_cbranch_scc1 K1_end
    s_mov_b64 exec, 1
    buffer_store_dword v{acc(2,0)}, v14, s[28:31], s36 offen offset:{320*4}
    K1_end:
    s_endpgm
    """)
    return a.text(), 208

if __name__ == "__main__":
    t, v = gen_k1()
    print(t)
```

```python
from common import *

CH = 20480
NBUF = 4
XCH = CH*NBUF
K2_LDS = XCH + 8192

def gen_k2(prof=False, **kw):
    a = Asm()
    def stamp(i):
        if prof: a(f"s_memtime s[{60+2*i}:{61+2*i}]")
    def dump(n):
        if prof:
            a(f"""
            s_waitcnt vmcnt(0) lgkmcnt(0)
            s_memtime s[{60+2*n}:{61+2*n}]
            s_memrealtime s[82:83]
            s_mov_b64 exec, 1
            s_lshl_b32 s3, s2, 4
            s_add_u32 s3, s3, s16
            s_lshl_b32 s3, s3, 6
            s_add_u32 s3, s3, {WS_PROF}
            v_mov_b32 v1, s3
            s_waitcnt lgkmcnt(0)
            """)
            for i in range(n+1):
                a(f"v_mov_b32 v2, s{60+2*i}")
                a(f"buffer_store_dword v2, v1, s[28:31], 0 offen offset:{4*i}")
            a("v_mov_b32 v2, s80")
            a("buffer_store_dword v2, v1, s[28:31], 0 offen offset:56")
            a("v_mov_b32 v2, s82")
            a("buffer_store_dword v2, v1, s[28:31], 0 offen offset:60")
    Q1 = 4; W0 = 8; W1 = 14; CB = 20; SS = [36, 52]; P = 68; O = 76
    K1 = [92, 96]; K2 = [100, 104]; V = [108, 116]
    VKA, VKN, VVA, VVN, VKL, VVL = 124, 125, 126, 127, 128, 129
    NV = 136
    q2v = [W0+2, W0, W1+2, W1]
    a(f"""
    s_cmp_ge_u32 s2, 256
    s_cbranch_scc1 K2_end
    s_load_dwordx2 s[12:13], s[0:1], 88
    v_lshrrev_b32 v1, 6, v0
    v_and_b32 v0, 63, v0
    s_and_b32 s18, s2, 7
    s_lshr_b32 s19, s2, 3
    v_readfirstlane_b32 s16, v1
    s_and_b32 s14, s19, 3
    s_lshl_b32 s3, s18, 2
    s_add_u32 s14, s14, s3
    s_lshr_b32 s15, s2, 5
    s_mul_i32 s17, s14, 163840
    s_add_u32 s17, s17, {WS_KV}
    v_lshlrev_b32 v{VKL}, 4, v0
    """)
    if prof: a("s_memrealtime s[80:81]")
    stamp(0)
    a(f"""
    s_mov_b32 s30, {WS_SIZE}
    s_mov_b32 s31, 0x20000
    s_cmp_ge_u32 s16, 8
    s_waitcnt lgkmcnt(0)
    s_mov_b32 s28, s12
    s_mov_b32 s29, s13
    s_cbranch_scc1 K2_bg
    """)
    a(f"""
    ; Q loads
    s_lshr_b32 s3, s16, 2
    s_lshl_b32 s20, s15, 1
    s_add_u32 s20, s20, s3
    s_mul_i32 s20, s20, 5120
    s_mul_i32 s3, s14, 81920
    s_add_u32 s20, s20, s3
    s_and_b32 s21, s16, 3
    s_lshl_b32 s3, s21, 10
    s_add_u32 s22, s20, s3
    s_lshr_b32 s3, s21, 1
    s_lshl_b32 s3, s3, 9
    s_add_u32 s23, s20, s3
    s_and_b32 s3, s21, 1
    s_lshl_b32 s3, s3, 3
    s_add_u32 s23, s23, s3
    s_add_u32 s23, s23, 4096
    v_and_b32 v1, 31, v0
    v_lshlrev_b32 v2, 4, v1
    buffer_load_dwordx4 {vr(Q1,4)}, v{VKL}, s[28:31], s22 offen
    buffer_load_dwordx2 v[{W0+2}:{W0+3}], v2, s[28:31], s23 offen
    v_lshrrev_b32 v3, 5, v0
    v_mul_u32_u24 v3, 320, v3
    v_add3_u32 v{VVL}, v2, v3, 0
    v_add_u32 v{VVL}, 5120, v{VVL}
    v_mov_b32 v{VKA}, v{VKL}
    v_mov_b32 v{VVA}, v{VVL}
    v_add_u32 v{VKN}, {CH}, v{VKL}
    v_add_u32 v{VVN}, {CH}, v{VVL}
    s_mov_b32 s40, 0xfffff
    s_mov_b32 s41, 0xfffff
    s_mov_b32 s42, -1
    s_mov_b32 s43, 0
    v_cmp_eq_u32 vcc, 20, v1
    v_mov_b32 v3, 0x3f803f80
    s_mov_b32 s45, {CH}
    s_mov_b32 s46, 0
    s_mov_b32 s47, 0
    v_cndmask_b32 v{V[0]}, 0, v3, vcc
    """)
    for i in range(1, 16):
        a(f"v_mov_b32 v{V[0]+i}, v{V[0]}")
    for i in range(16):
        a(f"v_mov_b32 v{O+i}, 0")
    for i in range(4, 8):
        a(f"v_mov_b32 v{P+i}, 0")
    for r in (W0, W0+1, W0+4, W0+5, W1, W1+1, W1+4, W1+5):
        a(f"v_mov_b32 v{r}, 0")
    stamp(1)
    a(f"""
    s_barrier
    """)
    stamp(2)
    a(f"""
    ds_read_b128 {vr(K1[0],4)}, v{VKA}
    ds_read_b128 {vr(K2[0],4)}, v{VKA} offset:4096
    ds_read_b128 {vr(K1[1],4)}, v{VKA} offset:1024
    s_mov_b64 exec, s[40:41]
    ds_read_b128 {vr(V[0],4)}, v{VVA}
    ds_read_b128 {vr(V[0]+4,4)}, v{VVA} offset:640
    s_mov_b64 exec, -1
    s_waitcnt vmcnt(0)
    v_cndmask_b32 v{W1+2}, v{W0+2}, 0, s[42:43]
    v_cndmask_b32 v{W1+3}, v{W0+3}, 0, s[42:43]
    v_cndmask_b32 v{W0+2}, 0, v{W0+2}, s[42:43]
    v_cndmask_b32 v{W0+3}, 0, v{W0+3}, s[42:43]
    s_waitcnt lgkmcnt(0)
    v_mfma_f32_32x32x16_bf16 {vr(SS[0],16)}, {vr(K1[0],4)}, {vr(Q1,4)}, 0
    v_mfma_f32_32x32x16_bf16 {vr(SS[0],16)}, {vr(K2[0],4)}, {vr(q2v[0],4)}, {vr(SS[0],16)}
    s_nop 15
    """)
    s0 = SS[0]
    a(f"v_max3_f32 v1, v{s0}, v{s0+1}, v{s0+2}")
    a(f"v_max3_f32 v2, v{s0+3}, v{s0+4}, v{s0+5}")
    a(f"v_max3_f32 v1, v1, v{s0+6}, v{s0+7}")
    a(f"v_max3_f32 v2, v2, v{s0+8}, v{s0+9}")
    a(f"v_max3_f32 v1, v1, v{s0+10}, v{s0+11}")
    a(f"v_max3_f32 v2, v2, v{s0+12}, v{s0+13}")
    a(f"v_max3_f32 v1, v1, v{s0+14}, v{s0+15}")
    a(f"""
    v_max_f32 v1, v1, v2
    v_mov_b32 v2, v1
    s_nop 1
    v_permlane32_swap_b32 v1, v2
    v_max_f32 v1, v1, v2
    v_sub_f32 v{CB}, 0, v1
    """)
    for i in range(1, 16):
        a(f"v_mov_b32 v{CB+i}, v{CB}")
    for i in range(16):
        a(f"v_add_f32 v{s0+i}, v{s0+i}, v{CB}")
    stamp(3)
    a("K2_loop:")
    def koff(t):
        reg = VKA if t < 8 else VKN
        t %= 8
        return reg, (t//4)*10240 + (t%4)*1024
    def voff(t):
        reg = VVA if t < 8 else VVN
        t %= 8
        return reg, (t//4)*10240 + (t%4)*1280
    for i in range(8):
        cur = i % 2; nxt = 1 - cur
        sc = SS[cur]; sn = SS[nxt]
        ex = lambda r: f"v_exp_f32 v{sc+r}, v{sc+r}"
        cv = lambda k: f"v_cvt_pk_bf16_f32 v{P+k}, v{sc+2*k}, v{sc+2*k+1}"
        a("s_waitcnt lgkmcnt(0)")
        if i == 6:
            a("s_barrier")
        a(f"v_mfma_f32_32x32x16_bf16 {vr(sn,16)}, {vr(K1[nxt],4)}, {vr(Q1,4)}, {vr(CB,16)}")
        r, o = koff(i+2)
        a(f"ds_read_b128 {vr(K1[cur],4)}, v{r} offset:{o}")
        for k in range(4): a(ex(k))
        a(f"v_mfma_f32_32x32x16_bf16 {vr(O,16)}, {vr(V[nxt]+4,4)}, {vr(P+4,4)}, {vr(O,16)}")
        r, o = voff(i+1)
        a(f"""
        s_mov_b64 exec, s[40:41]
        ds_read_b128 {vr(V[nxt],4)}, v{r} offset:{o}
        ds_read_b128 {vr(V[nxt]+4,4)}, v{r} offset:{o+640}
        s_mov_b64 exec, -1
        """)
        for k in range(4, 8): a(ex(k))
        a(cv(0)); a(cv(1))
        t1 = (i+1) % 8
        a(f"v_mfma_f32_32x32x16_bf16 {vr(sn,16)}, {vr(K2[t1//4],4)}, {vr(q2v[t1%4],4)}, {vr(sn,16)}")
        if (i+2) % 4 == 0:
            r, o = koff(i+2)
            a(f"ds_read_b128 {vr(K2[((i+2)%8)//4],4)}, v{r} offset:{o+4096}")
        a(cv(2)); a(cv(3))
        for k in range(8, 12): a(ex(k))
        a(f"v_mfma_f32_32x32x16_bf16 {vr(O,16)}, {vr(V[cur],4)}, {vr(P,4)}, {vr(O,16)}")
        for k in range(12, 16): a(ex(k))
        for k in range(4, 8): a(cv(k))
    a(f"""
    s_add_u32 s45, s45, {CH}
    s_cmp_eq_u32 s45, {CH*NBUF}
    s_cselect_b32 s45, 0, s45
    v_mov_b32 v{VKA}, v{VKN}
    v_mov_b32 v{VVA}, v{VVN}
    v_add_u32 v{VKN}, s45, v{VKL}
    v_add_u32 v{VVN}, s45, v{VVL}
    s_add_u32 s46, s46, 1
    s_cmp_lt_u32 s46, 8
    s_cbranch_scc1 K2_loop
    v_mfma_f32_32x32x16_bf16 {vr(O,16)}, {vr(V[1]+4,4)}, {vr(P+4,4)}, {vr(O,16)}
    """)
    stamp(4)
    a(f"""
    K2_fin:
    s_lshl_b32 s3, s15, 4
    s_lshl_b32 s20, s16, 1
    s_add_u32 s20, s20, s3
    s_mul_i32 s20, s20, 20480
    s_add_u32 s20, s20, {WS_O}
    s_lshr_b32 s3, s14, 1
    s_lshl_b32 s21, s3, 10
    s_and_b32 s22, s14, 1
    s_lshl_b32 s23, s22, 9
    s_add_u32 s21, s21, s23
    s_add_u32 s21, s21, s20
    s_lshl_b32 s3, s3, 8
    s_lshl_b32 s22, s22, 3
    s_add_u32 s22, s22, s3
    s_add_u32 s22, s22, s20
    s_add_u32 s22, s22, 16384
    v_and_b32 v1, 15, v0
    v_bfe_u32 v2, v0, 4, 1
    v_mul_u32_u24 v2, 20480, v2
    v_lshl_add_u32 v1, v1, 4, v2
    v_lshrrev_b32 v2, 5, v0
    v_lshl_add_u32 v2, v2, 8, v1
    s_nop 3
    v_mov_b32 v{K1[0]}, v{O+8}
    v_mov_b32 v{K1[0]+1}, v{O+8}
    v_max3_f32 v3, |v{O}|, |v{O+1}|, |v{O+2}|
    v_max3_f32 v3, v3, |v{O+3}|, |v{O+4}|
    v_permlane32_swap_b32 v{K1[0]}, v{K1[0]+1}
    v_max3_f32 v3, v3, |v{O+5}|, |v{O+6}|
    v_max3_f32 v3, v3, |v{O+7}|, |v{O+8}|
    v_cndmask_b32 v{K1[1]}, 0, v{O+9}, s[42:43]
    v_cndmask_b32 v{K1[1]+1}, 0, v{O+10}, s[42:43]
    v_cndmask_b32 v{K1[1]+2}, 0, v{O+11}, s[42:43]
    v_rcp_f32 v{K1[0]+2}, v{K1[0]+1}
    v_add_f32 v{K1[1]+3}, v{O}, v{O+1}
    v_max3_f32 v3, v3, |v{K1[1]}|, |v{K1[1]+1}|
    v_max_f32 v3, v3, |v{K1[1]+2}|
    """)
    a(f"""
    s_mov_b32 s3, {f32bits(2.0**100)}
    v_cmp_ngt_f32 vcc, s3, v3
    v_cmp_u_f32 s[24:25], v{O}, v{O+1}
    s_or_b64 vcc, vcc, s[24:25]
    v_cmp_u_f32 s[24:25], v{O+2}, v{O+3}
    s_or_b64 vcc, vcc, s[24:25]
    v_cmp_u_f32 s[24:25], v{O+4}, v{O+5}
    s_or_b64 vcc, vcc, s[24:25]
    v_cmp_u_f32 s[24:25], v{O+6}, v{O+7}
    s_or_b64 vcc, vcc, s[24:25]
    v_cmp_u_f32 s[24:25], v{O+8}, v{K1[1]}
    s_or_b64 vcc, vcc, s[24:25]
    v_cmp_u_f32 s[24:25], v{K1[1]+1}, v{K1[1]+2}
    s_or_b64 vcc, vcc, s[24:25]
    s_cmp_eq_u64 vcc, 0
    s_cbranch_scc1 K2_store
    s_cmp_eq_u32 s47, 0
    s_cbranch_scc1 K2_fallback
    K2_store:
    """)
    R = K1[0]+2
    for i in range(12):
        a(f"v_mul_f32 v{O+i}, v{O+i}, v{R}")
    for k in range(6):
        a(f"v_cvt_pk_bf16_f32 v{P+k}, v{O+2*k}, v{O+2*k+1}")
    a(f"""
    buffer_store_dwordx4 {vr(P,4)}, v2, s[28:31], s21 offen
    s_mov_b64 exec, s[42:43]
    buffer_store_dwordx2 {vr(P+4,2)}, v1, s[28:31], s22 offen
    """)
    stamp(5); dump(6)
    a("s_endpgm")
    a(f"""
    K2_fallback:
    s_mov_b32 s47, 1
    v_mov_b32 v3, 0xff800000
    s_mov_b32 s46, 0
    s_mov_b32 s20, s17
    K2_fbA:
    buffer_load_dwordx4 {vr(K2[0],4)}, v{VKL}, s[28:31], s20 offen offset:4095
    """)
    a.lines.pop()
    a(f"""
    s_add_u32 s21, s20, 4096
    buffer_load_dwordx4 {vr(K2[0],4)}, v{VKL}, s[28:31], s21 offen
    """)
    for t in range(4):
        a(f"""
        buffer_load_dwordx4 {vr(K1[0],4)}, v{VKL}, s[28:31], s20 offen offset:{t*1024}
        s_waitcnt vmcnt(0)
        v_mfma_f32_32x32x16_bf16 {vr(s0,16)}, {vr(K1[0],4)}, {vr(Q1,4)}, 0
        v_mfma_f32_32x32x16_bf16 {vr(s0,16)}, {vr(K2[0],4)}, {vr(q2v[t],4)}, {vr(s0,16)}
        s_nop 15
        """)
        for k in range(8):
            a(f"v_max3_f32 v3, v3, v{s0+2*k}, v{s0+2*k+1}")
    a(f"""
    s_add_u32 s20, s20, 10240
    s_add_u32 s46, s46, 1
    s_cmp_lt_u32 s46, 16
    s_cbranch_scc1 K2_fbA
    v_mov_b32 v2, v3
    s_nop 1
    v_permlane32_swap_b32 v3, v2
    v_max_f32 v3, v3, v2
    v_sub_f32 v{CB}, 0, v3
    """)
    for i in range(1, 16):
        a(f"v_mov_b32 v{CB+i}, v{CB}")
    for i in range(16):
        a(f"v_mov_b32 v{O+i}, 0")
    a(f"""
    s_mov_b32 s46, 0
    s_mov_b32 s20, s17
    K2_fbB:
    s_add_u32 s21, s20, 4096
    buffer_load_dwordx4 {vr(K2[0],4)}, v{VKL}, s[28:31], s21 offen
    """)
    for t in range(4):
        a(f"""
        buffer_load_dwordx4 {vr(K1[0],4)}, v{VKL}, s[28:31], s20 offen offset:{t*1024}
        s_add_u32 s21, s20, {t*1280}
        s_mov_b64 exec, s[40:41]
        buffer_load_dwordx4 {vr(V[0],4)}, v{VVL}, s[28:31], s21 offen
        buffer_load_dwordx4 {vr(V[0]+4,4)}, v{VVL}, s[28:31], s21 offen offset:640
        s_mov_b64 exec, -1
        s_waitcnt vmcnt(0)
        v_mfma_f32_32x32x16_bf16 {vr(s0,16)}, {vr(K1[0],4)}, {vr(Q1,4)}, {vr(CB,16)}
        v_mfma_f32_32x32x16_bf16 {vr(s0,16)}, {vr(K2[0],4)}, {vr(q2v[t],4)}, {vr(s0,16)}
        s_nop 15
        """)
        for k in range(16): a(f"v_exp_f32 v{s0+k}, v{s0+k}")
        a("s_nop 0")
        for k in range(8): a(f"v_cvt_pk_bf16_f32 v{P+k}, v{s0+2*k}, v{s0+2*k+1}")
        a(f"""
        s_nop 1
        v_mfma_f32_32x32x16_bf16 {vr(O,16)}, {vr(V[0],4)}, {vr(P,4)}, {vr(O,16)}
        v_mfma_f32_32x32x16_bf16 {vr(O,16)}, {vr(V[0]+4,4)}, {vr(P+4,4)}, {vr(O,16)}
        s_nop 7
        """)
    a(f"""
    s_add_u32 s20, s20, 10240
    s_add_u32 s46, s46, 1
    s_cmp_lt_u32 s46, 16
    s_cbranch_scc1 K2_fbB
    s_branch K2_fin
    """)
    def dma():
        a(f"""
        s_add_u32 m0, s46, s47
        s_add_u32 s3, s45, 4096
        buffer_load_dwordx4 v{VKL}, s[28:31], s45 offen lds
        buffer_load_dwordx4 v{VKL}, s[28:31], s45 offen offset:1024 lds
        buffer_load_dwordx4 v{VKL}, s[28:31], s45 offen offset:2048 lds
        buffer_load_dwordx4 v{VKL}, s[28:31], s45 offen offset:3072 lds
        s_add_u32 m0, m0, 4096
        s_add_u32 s45, s45, {CH}
        buffer_load_dwordx4 v{VKL}, s[28:31], s3 offen lds
        s_add_u32 s47, s47, {CH}
        s_cmp_eq_u32 s47, {CH*NBUF}
        s_cselect_b32 s47, 0, s47
        """)
    a(f"""
    K2_bg:
    s_sub_u32 s44, s16, 8
    s_mul_i32 s46, s44, 5120
    s_add_u32 s45, s17, s46
    s_mov_b32 s47, 0
    """)
    dma()
    dma()
    a(f"""
    s_load_dwordx4 s[4:7], s[0:1], 32
    s_load_dwordx2 s[8:9], s[0:1], 0
    s_load_dwordx2 s[10:11], s[0:1], 16
    s_load_dwordx2 s[32:33], s[0:1], 64
    s_mov_b32 s48, 0
    s_cmp_ge_u32 s19, 24
    s_cbranch_scc1 K2_side
    s_cmp_ge_u32 s19, 11
    s_cselect_b32 s20, 1, 0
    s_mul_i32 s3, s20, 11
    s_sub_u32 s21, s19, s3
    s_lshl_b32 s3, s18, 1
    s_add_u32 s20, s20, s3
    s_cmp_lt_u32 s19, 22
    s_cbranch_scc1 K2_fn
    s_mov_b32 s20, 16
    s_sub_u32 s21, s19, 22
    s_lshl_b32 s21, s21, 3
    s_add_u32 s21, s21, s18
    s_cmp_lt_u32 s21, 11
    s_cbranch_scc1 K2_fn
    s_waitcnt vmcnt(5)
    s_barrier
    K2_idle:
    s_waitcnt vmcnt(0)
    s_cmp_ge_u32 s48, 6
    s_cbranch_scc1 K2_idle2
    """)
    dma()
    a(f"""
    K2_idle2:
    s_barrier
    s_add_u32 s48, s48, 1
    s_cmp_lt_u32 s48, 8
    s_cbranch_scc1 K2_idle
    s_endpgm
    """)
    AF = 8; BF = 40; AC = 72
    a(f"""
    K2_fn:
    s_and_b32 s22, s44, 1
    s_lshr_b32 s23, s44, 1
    s_lshl_b32 s24, s20, 6
    s_lshl_b32 s3, s23, 5
    s_add_u32 s24, s24, s3
    ; s24 = t0
    v_and_b32 v1, 31, v0
    v_lshrrev_b32 v2, 5, v0
    v_add_u32 v3, s24, v1
    v_lshlrev_b32 v4, 12, v3
    v_lshl_add_u32 v4, v2, 6, v4
    s_lshl_b32 s25, s21, 16
    s_mul_i32 s3, s22, {WS_BO - WS_AE}
    s_add_u32 s25, s25, s3
    s_add_u32 s25, s25, {WS_AE}
    s_mov_b32 s26, 0
    s_lshl_b32 s27, s21, 7
    s_add_u32 s27, s27, {WS_A1024}
    v_lshlrev_b32 v5, 4, v2
    s_waitcnt lgkmcnt(0)
    s_cmp_eq_u32 s22, 1
    s_cselect_b64 s[36:37], s[6:7], s[4:5]
    s_mov_b32 s38, {S*S*2}
    s_mov_b32 s39, 0x20000
    """)
    for i in range(4):
        a(f"buffer_load_dwordx4 {vr(AC+4*i,4)}, v5, s[28:31], s27 offen offset:{32*i}")
    def fn_loads():
        for b in range(2):
            for u in range(4):
                a(f"buffer_load_dwordx4 {vr(BF+16*b+4*u,4)}, v4, s[36:39], s26 offen offset:{b*128+u*16}")
            for u in range(4):
                a(f"buffer_load_dwordx4 {vr(AF+16*b+4*u,4)}, v{VKL}, s[28:31], s25 offen offset:{u*1024}")
            a("s_add_u32 s25, s25, 4096")
        a("s_add_u32 s26, s26, 256")
    fn_loads()
    a(f"""
    s_waitcnt vmcnt(25)
    s_barrier
    s_waitcnt vmcnt(16)
    v_lshlrev_b32 v6, 31, v0
    s_cmp_eq_u32 s22, 1
    s_cselect_b64 s[34:35], 0, -1
    """)
    for i in range(16):
        a(f"v_xor_b32 v{AC+i}, v{AC+i}, v6")
    for i in range(16):
        a(f"v_cndmask_b32 v{AC+i}, 0, v{AC+i}, s[34:35]")
    a(f"""
    s_nop 1
    K2_fnloop:
    s_waitcnt vmcnt(0)
    """)
    for b in range(2):
        for u in range(4):
            a(f"v_mfma_f32_32x32x16_bf16 {vr(AC,16)}, {vr(AF+16*b+4*u,4)}, {vr(BF+16*b+4*u,4)}, {vr(AC,16)}")
    a(f"""
    s_cmp_ge_u32 s48, 6
    s_cbranch_scc1 K2_fn2
    """)
    dma()
    a(f"""
    K2_fn2:
    s_cmp_eq_u32 s48, 7
    s_cbranch_scc1 K2_fn3
    """)
    fn_loads()
    a(f"""
    s_barrier
    s_add_u32 s48, s48, 1
    s_branch K2_fnloop
    K2_fn3:
    s_lshl_b32 s3, s23, 12
    s_add_u32 s3, s3, {XCH}
    v_add_u32 v7, s3, v{VKL}
    s_cmp_eq_u32 s22, 1
    s_cbranch_scc1 K2_fnW
    s_nop 15
    """)
    for i in range(4):
        a(f"ds_write_b128 v7, {vr(AC+4*i,4)} offset:{1024*i}")
    a(f"""
    s_waitcnt lgkmcnt(0)
    s_barrier
    """)
    dump(1)
    a(f"""
    s_endpgm
    K2_fnW:
    s_barrier
    """)
    for i in range(4):
        a(f"ds_read_b128 {vr(AF+4*i,4)}, v7 offset:{1024*i}")
    a(f"""
    s_mov_b32 s34, 0
    s_mov_b32 s35, 0
    s_cmp_eq_u32 s21, 0
    s_cselect_b32 s34, -1, s34
    s_cmp_eq_u32 s21, 10
    s_cselect_b32 s34, -1, s34
    v_mul_u32_u24 v3, {YPITCH}, v3
    v_lshl_add_u32 v3, v2, 4, v3
    s_lshl_b32 s3, s21, 7
    s_add_u32 s25, s3, {WS_YM}
    s_add_u32 s26, s3, {WS_YP}
    v_cndmask_b32 v{AC}, v{AC}, 0, s[34:35]
    s_waitcnt lgkmcnt(0)
    """)
    for i in range(16):
        a(f"v_sub_f32 v{BF+i}, v{AF+i}, v{AC+i}")
        a(f"v_add_f32 v{BF+16+i}, v{AF+i}, v{AC+i}")
    for i in range(4):
        a(f"buffer_store_dwordx4 {vr(BF+4*i,4)}, v3, s[28:31], s25 offen offset:{32*i}")
        a(f"buffer_store_dwordx4 {vr(BF+16+4*i,4)}, v3, s[28:31], s26 offen offset:{32*i}")
    dump(1)
    a("s_endpgm")
    a(f"""
    K2_side:
    s_sub_u32 s20, s19, 24
    s_lshl_b32 s20, s20, 3
    s_add_u32 s20, s20, s18
    s_lshl_b32 s20, s20, 2
    s_add_u32 s20, s20, s44
    ; s20 = zw (0..255)
    v_and_b32 v1, 15, v0
    v_lshrrev_b32 v2, 4, v0
    v_lshlrev_b32 v3, 4, v1
    s_lshl_b32 s3, s20, 3
    v_add_u32 v4, s3, v2
    v_mul_u32_u24 v5, 1280, v4
    v_add_u32 v5, v5, v3
    v_lshlrev_b32 v4, 2, v4
    s_waitcnt lgkmcnt(0)
    s_mov_b32 s36, s8
    s_mov_b32 s37, s9
    s_mov_b32 s38, {S*D*2}
    s_mov_b32 s39, 0x20000
    s_mov_b32 s52, s32
    s_mov_b32 s53, s33
    s_mov_b32 s54, {D*2}
    s_mov_b32 s55, 0x20000
    s_mov_b32 s56, s10
    s_mov_b32 s57, s11
    s_mov_b32 s58, {D*D*2}
    s_mov_b32 s59, 0x20000
    s_mov_b32 s21, {4*1280}
    """)
    GW = 8; XA = 28; XB = 48
    for q in range(5):
        a(f"buffer_load_dwordx4 {vr(GW+4*q,4)}, v3, s[52:55], 0 offen offset:{256*q}")
    for q in range(5):
        a(f"buffer_load_dwordx4 {vr(XA+4*q,4)}, v5, s[36:39], 0 offen offset:{256*q}")
    for q in range(5):
        a(f"buffer_load_dwordx4 {vr(XB+4*q,4)}, v5, s[36:39], s21 offen offset:{256*q}")
    a(f"""
    s_waitcnt vmcnt(20)
    s_barrier
    s_waitcnt vmcnt(0)
    """)
    dma()
    a("v_mov_b32 v70, 0")
    a("v_mov_b32 v71, 0")
    for i in range(20):
        a(f"v_dot2_f32_bf16 v70, v{XA+i}, v{GW+i}, v70")
        a(f"v_dot2_f32_bf16 v71, v{XB+i}, v{GW+i}, v71")
    a("s_nop 3")
    for sh in (8, 4, 2, 1):
        a(f"""
        v_add_f32_dpp v70, v70, v70 row_ror:{sh} row_mask:0xf bank_mask:0xf
        v_add_f32_dpp v71, v71, v71 row_ror:{sh} row_mask:0xf bank_mask:0xf
        s_nop 1
        """)
    a(f"""
    v_mul_f32 v70, {f32bits(-math.log2(math.e))}, v70
    v_mul_f32 v71, {f32bits(-math.log2(math.e))}, v71
    v_exp_f32 v70, v70
    v_exp_f32 v71, v71
    s_nop 0
    v_add_f32 v70, 1.0, v70
    v_add_f32 v71, 1.0, v71
    v_rcp_f32 v70, v70
    v_rcp_f32 v71, v71
    s_mov_b32 s34, 0x00010001
    s_mov_b32 s35, 0x00010001
    s_mov_b32 s3, {WS_G}
    s_mov_b64 exec, s[34:35]
    buffer_store_dword v70, v4, s[28:31], s3 offen
    buffer_store_dword v71, v4, s[28:31], s3 offen offset:16
    s_mov_b64 exec, -1
    s_barrier
    s_mov_b32 s48, 1
    v_lshrrev_b32 v6, 2, v1
    v_lshlrev_b32 v6, 3, v6
    v_and_b32 v7, 3, v1
    v_add_u32 v6, v6, v7
    v_lshrrev_b32 v7, 1, v2
    v_mul_u32_u24 v7, 20, v7
    v_and_b32 v8, 1, v2
    v_lshl_add_u32 v7, v8, 2, v7
    v_mul_u32_u24 v8, 40, v2
    v_add_u32 v8, 16, v8
    K2_wo:
    s_waitcnt vmcnt(0)
    s_cmp_ge_u32 s48, 6
    s_cbranch_scc1 K2_wo2
    """)
    dma()
    a(f"""
    K2_wo2:
    s_cmp_ge_u32 s20, 800
    s_cbranch_scc1 K2_wo3
    s_mul_i32 s21, s20, 3277
    s_lshr_b32 s21, s21, 16
    s_mul_i32 s3, s21, 20
    s_sub_u32 s22, s20, s3
    s_mul_i32 s23, s21, 13108
    s_lshr_b32 s23, s23, 16
    s_mul_i32 s3, s23, 5
    s_sub_u32 s24, s21, s3
    s_mul_i32 s23, s23, 80
    s_lshr_b32 s3, s24, 1
    s_lshl_b32 s3, s3, 5
    s_add_u32 s23, s23, s3
    s_and_b32 s3, s24, 1
    s_lshl_b32 s3, s3, 2
    s_add_u32 s23, s23, s3
    s_cmp_eq_u32 s24, 4
    s_cselect_b64 s[34:35], -1, 0
    v_cndmask_b32 v9, v6, v1, s[34:35]
    v_add_u32 v9, s23, v9
    s_mul_i32 s25, s22, 40
    s_sub_u32 s3, s22, 16
    s_mul_i32 s3, s3, 160
    s_mov_b32 s26, {8*1280}
    s_cmp_ge_u32 s22, 16
    s_cselect_b32 s25, s3, s25
    s_cselect_b32 s26, {20*1280}, s26
    s_cselect_b64 s[34:35], -1, 0
    v_cndmask_b32 v10, v7, v8, s[34:35]
    v_add_u32 v10, s25, v10
    v_mul_u32_u24 v10, 1280, v10
    v_lshl_add_u32 v10, v9, 1, v10
    """)
    for j in range(4):
        a(f"buffer_load_ushort v{12+j}, v10, s[56:59], 0 offen offset:{1280*j}")
    for j in range(4):
        a(f"buffer_load_ushort v{16+j}, v10, s[56:59], s26 offen offset:{1280*j}")
    a(f"""
    s_lshl_b32 s3, s20, 10
    s_add_u32 s3, s3, {WS_WO}
    s_waitcnt vmcnt(0)
    v_lshl_or_b32 v20, v13, 16, v12
    v_lshl_or_b32 v21, v15, 16, v14
    v_lshl_or_b32 v22, v17, 16, v16
    v_lshl_or_b32 v23, v19, 16, v18
    buffer_store_dwordx4 v[20:23], v{VKL}, s[28:31], s3 offen
    s_add_u32 s20, s20, 256
    K2_wo3:
    s_barrier
    s_add_u32 s48, s48, 1
    s_cmp_lt_u32 s48, 8
    s_cbranch_scc1 K2_wo
    """)
    dump(1)
    a(f"""
    K2_end:
    s_endpgm
    """)
    return a.text(), NV

if __name__ == "__main__":
    print(gen_k2()[0])
```

```python
from common import *
K3_LDS = 4*3*5*1024

def gen_k3(prof=False, **kw):
    a = Asm()
    def stamp(i):
        if prof: a(f"s_memtime s[{60+2*i}:{61+2*i}]")
    def dump(n):
        if prof:
            a(f"""
            s_waitcnt vmcnt(0) lgkmcnt(0)
            s_memtime s[{60+2*n}:{61+2*n}]
            s_memrealtime s[82:83]
            s_mov_b64 exec, 1
            s_lshl_b32 s3, s2, 3
            s_add_u32 s3, s3, s16
            s_lshl_b32 s3, s3, 6
            s_add_u32 s3, s3, {WS_PROF}
            v_mov_b32 v1, s3
            s_waitcnt lgkmcnt(0)
            """)
            for i in range(n+1):
                a(f"v_mov_b32 v2, s{60+2*i}")
                a(f"buffer_store_dword v2, v1, s[28:31], 0 offen offset:{4*i}")
            a("v_mov_b32 v2, s80")
            a("buffer_store_dword v2, v1, s[28:31], 0 offen offset:56")
            a("v_mov_b32 v2, s82")
            a("buffer_store_dword v2, v1, s[28:31], 0 offen offset:60")
    OF = 32
    WF = 112
    YR = 212
    GR = 232
    def of(st, s): return OF + (st*4 + s)*4
    def wf(st, t): return WF + (st*5 + t)*4
    def acc(s, t): return (s*5 + t)*4
    a(f"""
    s_cmp_ge_u32 s2, 256
    s_cbranch_scc1 K3_end
    s_load_dwordx2 s[12:13], s[0:1], 88
    s_load_dwordx2 s[10:11], s[0:1], 72
    v_lshrrev_b32 v1, 6, v0
    v_and_b32 v0, 63, v0
    s_and_b32 s18, s2, 7
    s_lshr_b32 s19, s2, 3
    v_readfirstlane_b32 s16, v1
    s_and_b32 s14, s19, 3
    s_lshl_b32 s3, s18, 2
    s_add_u32 s14, s14, s3
    s_lshr_b32 s15, s19, 2
    v_lshlrev_b32 v2, 4, v0
    v_add_u32 v3, 4096, v2
    s_mov_b32 s30, {WS_SIZE}
    s_mov_b32 s31, 0x20000
    """)
    if prof: a("s_memrealtime s[80:81]")
    stamp(0)
    a(f"""
    s_mul_i32 s17, s16, 5120
    s_mul_i32 s20, s14, {4*20480}
    s_add_u32 s20, s20, s17
    s_add_u32 s20, s20, {WS_O}
    """)
    for sl in range(4):
        a(f"""
        s_add_u32 s3, s16, {sl}
        s_and_b32 s{36+sl}, s3, 3
        s_mul_i32 s3, s{36+sl}, 20480
        s_add_u32 s{32+sl}, s20, s3
        """)
    a(f"""
    s_mul_i32 s40, s15, {5*20480}
    s_add_u32 s40, s40, s17
    s_add_u32 s40, s40, {WS_WO}
    s_add_u32 s41, s40, 20480
    s_add_u32 s42, s40, {2*20480}
    s_add_u32 s43, s40, {3*20480}
    s_add_u32 s44, s40, {4*20480}
    s_waitcnt lgkmcnt(0)
    s_mov_b32 s28, s12
    s_mov_b32 s29, s13
    """)
    for st in range(5):
        va, off = ("v2", st*1024) if st < 4 else ("v3", 0)
        for t in range(5):
            a(f"buffer_load_dwordx4 {vr(wf(st,t),4)}, {va}, s[28:31], s{40+t} offen offset:{off}")
            if t < 4:
                a(f"buffer_load_dwordx4 {vr(of(st,t),4)}, {va}, s[28:31], s{32+t} offen offset:{off}")
    a(f"""
    v_and_b32 v4, 15, v0
    v_lshrrev_b32 v5, 4, v0
    s_lshl_b32 s3, s14, 5
    s_and_b32 s21, s16, 1
    s_lshl_b32 s21, s21, 4
    s_add_u32 s3, s3, s21
    v_add_u32 v6, s3, v4
    ; v6 = s_f
    s_lshr_b32 s21, s16, 1
    s_cmp_eq_u32 s21, 1
    s_cselect_b64 s[22:23], -1, 0
    v_cmp_eq_u32 vcc, 0, v6
    s_and_b64 s[24:25], vcc, s[22:23]
    s_andn2_b64 s[26:27], s[22:23], vcc
    v_mov_b32 v7, 1024
    v_cndmask_b32 v7, v6, v7, s[24:25]
    ; v7 = t'
    v_sub_u32 v8, 2048, v6
    v_cndmask_b32 v8, v7, v8, s[26:27]
    s_cmp_ge_u32 s15, 4
    s_cselect_b64 s[22:23], -1, 0
    s_xor_b64 s[26:27], s[26:27], s[22:23]
    v_mov_b32 v9, {WS_YM}
    v_mov_b32 v10, {WS_YP}
    v_cndmask_b32 v9, v9, v10, s[26:27]
    s_mov_b32 s3, {YPITCH}
    v_mad_u32_u24 v9, v7, s3, v9
    s_mul_i32 s21, s15, 80
    v_lshl_add_u32 v10, v5, 3, s21
    v_lshl_add_u32 v11, v5, 2, s21
    v_add_u32 v11, 64, v11
    s_mov_b32 s46, 0
    s_mov_b32 s47, 4
    s_cmp_ge_u32 s15, 4
    s_cselect_b32 s46, {637*4}, s46
    s_cselect_b32 s47, -4, s47
    v_add_u32 v9, s46, v9
    v_mad_i32_i24 v12, v10, s47, v9
    v_mad_i32_i24 v16, v11, s47, v9
    s_mul_i32 s48, s47, 4
    s_mul_i32 s49, s47, 32
    s_mul_i32 s50, s47, 36
    v_add_u32 v13, s48, v12
    v_add_u32 v14, s49, v12
    v_add_u32 v15, s50, v12
    v_lshlrev_b32 v17, 2, v8
    s_mov_b32 s3, {WS_G}
    """)
    for t in range(5):
        a(f"buffer_load_dwordx4 {vr(YR+4*t,4)}, v{12+t}, s[28:31], 0 offen")
    a(f"buffer_load_dword v{GR}, v17, s[28:31], s3 offen")
    a(f"""
    v_mul_u32_u24 v18, 1280, v8
    v_lshl_add_u32 v19, v11, 1, v18
    v_lshl_add_u32 v18, v10, 1, v18
    s_mov_b32 s4, s10
    s_mov_b32 s5, s11
    s_mov_b32 s6, {S*D*2}
    s_mov_b32 s7, 0x20000
    """)
    for sl in range(1, 4):
        a(f"""
        s_mul_i32 s3, s{36+sl}, 15360
        s_add_u32 s3, s3, {(sl-1)*5120}
        v_add_u32 v{20+sl}, s3, v2
        """)
    a(f"""
    s_mul_i32 s3, s16, 15360
    v_add_u32 v20, s3, v2
    """)
    stamp(1)
    for st in range(5):
        a(f"s_waitcnt vmcnt({(4-st)*9 + 6})")
        if st == 0: stamp(2)
        for t in range(5):
            for s in range(4):
                c = "0" if st == 0 else ar(acc(s,t),4)
                a(f"v_mfma_f32_16x16x32_bf16 {ar(acc(s,t),4)}, {vr(wf(st,t),4)}, {vr(of(st,s),4)}, {c}")
    stamp(3)
    a("s_nop 7")
    for sl in range(1, 4):
        for t in range(5):
            a(f"ds_write_b128 v{20+sl}, {ar(acc(sl,t),4)} offset:{t*1024}")
    for i in range(20):
        a(f"v_accvgpr_read_b32 v{OF+i}, a{i}")
    a(f"""
    s_waitcnt lgkmcnt(0)
    s_barrier
    """)
    RD = OF + 20
    for sl in range(3):
        for t in range(5):
            a(f"ds_read_b128 {vr(RD+(sl*5+t)*4,4)}, v20 offset:{sl*5120+t*1024}")
    for sl in range(3):
        a(f"s_waitcnt lgkmcnt({(2-sl)*5})")
        for i in range(20):
            a(f"v_add_f32 v{OF+i}, v{OF+i}, v{RD+sl*20+i}")
    a(f"""
    s_waitcnt vmcnt(0)
    s_cmp_ge_u32 s15, 4
    s_cbranch_scc1 K3_mir
    """)
    for mir in (False, True):
        if mir: a("K3_mir:")
        for t in range(5):
            for r in range(4):
                y = YR + 4*t + (3-r if mir else r)
                a(f"v_sub_f32 v{OF+4*t+r}, v{OF+4*t+r}, v{y}")
            for r in range(4):
                y = YR + 4*t + (3-r if mir else r)
                a(f"v_fma_f32 v{OF+4*t+r}, v{OF+4*t+r}, v{GR}, v{y}")
        if not mir: a("s_branch K3_st")
    a("K3_st:")
    for k in range(10):
        a(f"v_cvt_pk_bf16_f32 v{RD+k}, v{OF+2*k}, v{OF+2*k+1}")
    a(f"""
    buffer_store_dwordx4 {vr(RD,4)}, v18, s[4:7], 0 offen
    buffer_store_dwordx4 {vr(RD+4,4)}, v18, s[4:7], 0 offen offset:64
    buffer_store_dwordx2 {vr(RD+8,2)}, v19, s[4:7], 0 offen
    """)
    stamp(4); dump(5)
    a(f"""
    K3_end:
    s_endpgm
    """)
    return a.text(), 236 + 80, 236

if __name__ == "__main__":
    print(gen_k3()[0])
```

```python
import sys, os
sys.path.insert(0, os.path.dirname(__file__))
from common import *
import importlib
HEADER = open("gated_mix__mha_block__spectral_fnet__prompt.s.ref").read().split("; Override launch geometry")[0]

def build(which=("k1","k2","k3"), out="gated_mix__mha_block__spectral_fnet__prompt.s", opts=None):
    opts = opts or {}
    ks = []
    if "k1" in which:
        import k1
        t, v = k1.gen_k1(**opts.get('k1', {}))
        ks.append(("k1_kernel", t, v, None, 256, 512, k1.K1_LDS))
    if "k2" in which:
        import k2
        t, v = k2.gen_k2(**opts.get("k2", {}))
        ks.append(("k2_kernel", t, v, None, 256, 768, k2.K2_LDS))
    if "k3" in which:
        import k3
        t, v, acc = k3.gen_k3(**opts.get('k3', {}))
        ks.append(("k3_kernel", t, v, acc, 256, 256, k3.K3_LDS))
    s = HEADER
    for name, t, v, acc, grid, block, lds in ks:
        s += f"; @launch kernel={name} grid=({grid},1,1) block=({block},1,1) lds={lds}\n"
    s += '.amdgcn_target "amdgcn-amd-amdhsa--gfx950"\n.text\n'
    for name, t, v, acc, grid, block, lds in ks:
        s += f".globl {name}\n.p2align 8\n.type {name},@function\n{name}:\n{t}"
    s += 'TEXT_END:\n    s_endpgm\n.section .rodata,"a"\n'
    for name, t, v, acc, grid, block, lds in ks:
        s += ".p2align 6\n" + kernel_desc(name, v, accum=acc)
    open(out, "w").write(s)
    return out

if __name__ == "__main__":
    which = sys.argv[1].split(",") if len(sys.argv) > 1 else ("k1","k2","k3")
    out = sys.argv[2] if len(sys.argv) > 2 else "gated_mix__mha_block__spectral_fnet__prompt.s"
    opts = {}
    if len(sys.argv) > 3:
        fl = {}
        for f in sys.argv[3].split(","):
            if "=" in f:
                kk, vv = f.split("="); fl[kk] = int(vv)
            else: fl[f] = True
        opts = {which[-1]: dict(fl)}
    print(build(which, out, opts))
```

```python
import math

class Asm:
    def __init__(self):
        self.lines = []
    def __call__(self, s):
        for l in s.strip("\n").split("\n"):
            l = l.strip()
            if not l:
                continue
            if l.endswith(":") and " " not in l:
                self.lines.append(l)
            else:
                self.lines.append("    " + l)
    def label(self, l):
        self.lines.append(l + ":")
    def text(self):
        return "\n".join(self.lines) + "\n"

def vr(a, n=None):
    if n is None or n == 1:
        return f"v{a}"
    return f"v[{a}:{a+n-1}]"
def sr(a, n=None):
    if n is None or n == 1:
        return f"s{a}"
    return f"s[{a}:{a+n-1}]"
def ar(a, n=None):
    if n is None or n == 1:
        return f"a{a}"
    return f"a[{a}:{a+n-1}]"

def f32bits(x):
    import struct
    return struct.unpack("<I", struct.pack("<f", x))[0]

S, D, H, DH = 2048, 640, 32, 20
WS_Q   = 0
WS_KV  = WS_Q + 32*16*5120
KV_SUB = 10496
KV_HEAD = 16*KV_SUB
VT = 1344; VG = 336
WS_AE  = WS_KV + 32*KV_HEAD + 4096
WS_BO  = WS_AE + 11*65536
WS_A1024 = WS_BO + 11*65536
WS_G   = WS_A1024 + 2048
YPITCH = 352*4
WS_YM  = WS_G + 8192
WS_YP  = WS_YM + 1088*YPITCH
WS_O   = WS_YP + 1088*YPITCH
WS_WO  = WS_O + 128*20480
WS_END = WS_WO + 40*20480
WS_PROF = 0x1000000
WS_SIZE = 268435456
QSCALE = (DH ** -0.5) * math.log2(math.e)

def kernel_desc(name, vgpr, sgpr=96, accum=None):
    if accum is None:
        accum = min(256, (vgpr + 3)//4*4)
    return f""".amdhsa_kernel {name}
  .amdhsa_next_free_vgpr {vgpr}
  .amdhsa_next_free_sgpr {sgpr}
  .amdhsa_accum_offset {accum}
  .amdhsa_group_segment_fixed_size 0
  .amdhsa_kernarg_size 96
  .amdhsa_user_sgpr_count 2
  .amdhsa_user_sgpr_kernarg_segment_ptr 1
  .amdhsa_system_sgpr_workgroup_id_x 1
.end_amdhsa_kernel
"""
if __name__ == "__main__":
    for k, v in list(globals().items()):
        if k.startswith("WS_"): print(k, v, hex(v))
```

```python
from common import *

STAGE = 36864
NST = 4
K1_LDS = STAGE * NST

def gen_k1(prof=False, nocomp=False, noload=False, nopf=True, noxr=False, nowr=False, pfd=3, noxpf=False, wtouch=0, cpf=1):
    a = Asm()
    def stamp(i):
        if prof:
            a(f"s_memtime s[{60+2*i}:{61+2*i}]")
    def dump(n):
        if prof:
            a(f"""
            s_waitcnt vmcnt(0) lgkmcnt(0)
            s_memtime s[{60+2*n}:{61+2*n}]
            s_memrealtime s[82:83]
            s_mov_b64 exec, 1
            s_lshl_b32 s3, s2, 3
            s_add_u32 s3, s3, s59
            s_lshl_b32 s3, s3, 6
            s_add_u32 s3, s3, {WS_PROF}
            v_mov_b32 v1, s3
            s_mov_b32 s28, s12
            s_mov_b32 s29, s13
            s_mov_b32 s30, {WS_SIZE}
            s_mov_b32 s31, 0x20000
            s_waitcnt lgkmcnt(0)
            """)
            for i in range(n+1):
                a(f"v_mov_b32 v2, s{60+2*i}")
                a(f"buffer_store_dword v2, v1, s[28:31], 0 offen offset:{4*i}")
            a("v_mov_b32 v2, s80")
            a("buffer_store_dword v2, v1, s[28:31], 0 offen offset:56")
            a("v_mov_b32 v2, s82")
            a("buffer_store_dword v2, v1, s[28:31], 0 offen offset:60")

    ACC = 128
    def acc(s, t): return ACC + (s*5 + t)*4
    SETX = [32, 68]; SETW = [48, 84]
    VXA = 104; VWA = 106
    BXA = 111; BWA = 113
    VPAT = 118
    a(f"""
    s_cmp_ge_u32 s2, 256
    s_cbranch_scc1 K1_end
    s_load_dwordx4 s[4:7], s[0:1], 0
    s_load_dwordx4 s[8:11], s[0:1], 48
    s_load_dwordx2 s[12:13], s[0:1], 88
    v_lshrrev_b32 v1, 6, v0
    v_and_b32 v0, 63, v0
    s_and_b32 s18, s2, 7
    s_lshr_b32 s19, s2, 3
    v_readfirstlane_b32 s16, v1
    s_and_b32 s14, s18, 1
    s_lshl_b32 s14, s14, 3
    s_and_b32 s3, s19, 7
    s_add_u32 s14, s14, s3
    s_lshr_b32 s17, s18, 1
    s_lshl_b32 s15, s17, 2
    s_lshr_b32 s3, s19, 3
    s_add_u32 s15, s15, s3
    """)
    if prof: a("s_mov_b32 s59, s16"); a("s_memrealtime s[80:81]")
    stamp(0)
    a(f"""
    s_cmp_ge_u32 s16, 4
    s_cbranch_scc0 K1_compute
    """)
    VX = 8; VW = 12
    a(f"""
    s_sub_u32 s16, s16, 4
    s_mov_b32 s34, 8
    s_mov_b32 s35, 16
    s_mov_b32 s36, 4
    s_cmp_eq_u32 s17, 2
    s_cselect_b32 s34, 16, s34
    s_cselect_b32 s35, 8, s35
    s_cmp_eq_u32 s17, 3
    s_cselect_b32 s34, 16, s34
    s_cselect_b32 s35, 4, s35
    s_cselect_b32 s36, 8, s36
    s_add_u32 s37, s34, s35
    v_lshrrev_b32 v1, 3, v0
    v_and_b32 v2, 3, v1
    v_lshrrev_b32 v3, 5, v0
    v_mad_u32_u24 v4, v3, s36, v2
    v_and_b32 v5, 7, v0
    v_xor_b32 v5, v5, v1
    s_lshl_b32 s38, s14, 6
    s_lshr_b32 s3, s16, 1
    s_lshl_b32 s3, s3, 5
    s_add_u32 s38, s38, s3
    s_sub_u32 s39, 2048, s38
    s_and_b32 s3, s16, 1
    s_cmp_eq_u32 s3, 1
    s_cselect_b32 s38, s39, s38
    s_mov_b32 s40, 1280
    s_cselect_b32 s40, -1280, s40
    s_mul_i32 s38, s38, 1280
    v_mul_i32_i24 v4, s40, v4
    v_lshl_add_u32 v4, v5, 4, v4
    s_mul_i32 s34, s34, s40
    s_mul_i32 s35, s35, s40
    s_mul_i32 s37, s37, s40
    s_add_u32 s34, s34, s38
    s_add_u32 s35, s35, s38
    s_add_u32 s37, s37, s38
    v_add_u32 v{VX}, s38, v4
    v_add_u32 v{VX+1}, s34, v4
    v_add_u32 v{VX+2}, s35, v4
    v_add_u32 v{VX+3}, s37, v4
    v_subrev_u32 v6, {1024*1280}, v{VX}
    v_cmp_le_u32 vcc, {2048*1280}, v{VX}
    s_waitcnt lgkmcnt(0)
    s_mov_b32 s20, s4
    s_mov_b32 s21, s5
    v_cndmask_b32 v{VX}, v{VX}, v6, vcc
    s_mov_b32 s22, {S*D*2}
    s_mov_b32 s23, 0x20000
    s_cmp_ge_u32 s15, 14
    s_cselect_b64 s[24:25], s[10:11], s[8:9]
    s_cmp_lt_u32 s15, 12
    s_cselect_b64 s[24:25], s[6:7], s[24:25]
    s_mov_b32 s26, {D*D*2}
    s_cselect_b32 s26, {D*3*D*2}, s26
    s_mov_b32 s27, 0x20000
    s_mov_b32 s32, 1280
    s_cselect_b32 s32, 3840, s32
    s_and_b32 s3, s15, 1
    s_cselect_b32 s3, s15, s3
    """)
    a.lines.pop(); a.lines.pop()
    a(f"""
    s_and_b32 s33, s15, 1
    s_cmp_lt_u32 s15, 12
    s_cselect_b32 s33, s15, s33
    s_mul_i32 s33, s33, 320
    s_lshl_b32 s44, s32, 6
    s_lshl_b32 s41, s16, 12
    s_mul_i32 s42, s16, 5120
    s_add_u32 s42, s42, 16384
    s_mul_i32 s3, s16, 320
    v_add_u32 v1, s3, v0
    """)
    stamp(1)
    def dmaX(j, base):
        a(f"""
        s_add_u32 m0, {base}, {j*1024}
        s_nop 0
        {"s_nop 0" if noload else f"buffer_load_dwordx4 v{VX+j}, s[20:23], s45 offen lds"}
        """)
    def dmaW(jj, base):
        a(f"""
        s_add_u32 m0, {base}, {jj*1024}
        s_nop 0
        {"s_nop 0" if noload else f"buffer_load_dwordx4 v{VW+jj}, s[24:27], s46 offen lds"}
        """)
    a(f"""
    s_mov_b32 s45, 0
    s_mov_b32 s46, 0
    s_mov_b32 s47, 0
    s_mov_b32 s43, 0
    """)
    for j in range(4): dmaX(j, "s41")
    for jj in range(5):
        a(f"""
        v_add_u32 v2, {64*jj}, v1
        v_mul_u32_u24 v3, 3277, v2
        v_lshrrev_b32 v3, 16, v3
        v_mul_u32_u24 v4, 20, v3
        v_sub_u32 v4, v2, v4
        v_lshrrev_b32 v5, 2, v3
        v_and_b32 v5, 2, v5
        v_xor_b32 v4, v4, v5
        v_lshl_add_u32 v4, v4, 4, s33
        v_mad_u32_u24 v{VW+jj}, v3, s32, v4
        """)
        dmaW(jj, "s42")
    def pf():
        if nopf:
            a("s_nop 0")
        else:
            a(f"""
            buffer_load_dword v23, v21, s[24:27], s53 offen
            """)
        a(f"""
        s_add_u32 s53, s53, s44
        """)
    NP = 0 if nopf else 1
    a(f"""
    s_and_b32 s3, s14, 3
    v_mov_b32 v21, v{VW}
    """)
    for jj in range(1, 4):
        a(f"""
        s_cmp_eq_u32 s3, {jj}
        s_cselect_b64 s[54:55], -1, 0
        v_cndmask_b32 v21, v21, v{VW+jj}, s[54:55]
        """)
    a(f"""
    s_mov_b32 s53, s44
    """)
    for i in range(pfd): pf()
    a(f"""
    s_waitcnt vmcnt({pfd*NP})
    s_barrier
    s_branch K1_ld_next
    K1_ld:
    s_add_u32 s50, s47, s41
    s_add_u32 s51, s47, s42
    """)
    for j in range(4): dmaX(j, "s50")
    for jj in range(5): dmaW(jj, "s51")
    pf()
    a("K1_ld_next:")
    a(f"""
    s_add_u32 s45, s45, 128
    s_add_u32 s46, s46, s44
    s_add_u32 s47, s47, {STAGE}
    s_cmp_eq_u32 s47, {STAGE*NST}
    s_cselect_b32 s47, 0, s47
    s_add_u32 s43, s43, 1
    s_cmp_lt_u32 s43, 4
    s_cbranch_scc1 K1_ld
    s_waitcnt vmcnt({18+3*NP})
    s_barrier
    s_cmp_lt_u32 s43, 10
    s_cbranch_scc1 K1_ld
    s_waitcnt vmcnt({9+2*NP})
    s_barrier
    s_waitcnt vmcnt(0)
    s_barrier
    """)
    dump(2)
    a("s_endpgm")
    WT = "" if not wtouch else f"""
    s_cmp_ge_u32 s15, 14
    s_cselect_b64 s[24:25], s[10:11], s[8:9]
    s_mov_b32 s32, 1280
    s_and_b32 s33, s15, 1
    s_mov_b32 s26, {D*D*2}
    s_cmp_lt_u32 s15, 12
    s_cselect_b64 s[24:25], s[6:7], s[24:25]
    s_cselect_b32 s32, 3840, s32
    s_cselect_b32 s33, s15, s33
    s_cselect_b32 s26, {D*3*D*2}, s26
    s_mov_b32 s27, 0x20000
    s_mul_i32 s33, s33, 320
    s_and_b32 s3, s14, 3
    s_lshl_b32 s3, s3, 2
    s_add_u32 s3, s3, s16
    s_mul_i32 s3, s3, 40
    s_mul_i32 s3, s3, s32
    s_add_u32 s33, s33, s3
    v_min_u32 v1, 39, v0
    v_mul_u32_u24 v1, s32, v1
    buffer_load_dword v122, v1, s[24:27], s33 offen
    """ + ("" if wtouch < 3 else """
    buffer_load_dword v122, v1, s[24:27], s33 offen offset:128
    buffer_load_dword v122, v1, s[24:27], s33 offen offset:256
    """)
    PF = "" if not cpf else """buffer_load_dword v120, v124, s[24:27], s53 offen
    buffer_load_dword v121, v123, s[20:23], s52 offen"""
    PF1 = "" if not cpf else """buffer_load_dword v120, v126, s[24:27], s53 offen
    buffer_load_dword v121, v125, s[20:23], s52 offen"""
    a(f"""
    K1_compute:
    s_and_b32 s3, s15, 3
    s_lshl_b32 s34, s14, 6
    s_lshl_b32 s35, s3, 5
    s_add_u32 s36, s34, s35
    s_sub_u32 s37, {2048-63-64}, s34
    s_add_u32 s37, s37, s35
    s_cmp_ge_u32 s3, 2
    s_cselect_b32 s36, s37, s36
    s_mul_i32 s52, s36, 1280
    s_lshl_b32 s3, s16, 7
    s_add_u32 s52, s52, s3
    v_and_b32 v1, 31, v0
    v_lshrrev_b32 v2, 5, v0
    v_mul_u32_u24 v125, 1280, v1
    v_mul_u32_u24 v3, 21846, v1
    v_lshrrev_b32 v3, 16, v3
    v_mul_u32_u24 v4, 3, v3
    v_sub_u32 v4, v1, v4
    v_min_u32 v3, 7, v3
    s_and_b32 s3, s14, 7
    s_lshl_b32 s53, s3, 3
    s_lshl_b32 s3, s16, 6
    s_add_u32 s53, s53, s3
    s_mov_b32 s32, 1280
    s_and_b32 s33, s15, 1
    s_mov_b32 s26, {D*D*2}
    s_cmp_lt_u32 s15, 12
    s_cselect_b32 s32, 3840, s32
    s_cselect_b32 s33, s15, s33
    s_cselect_b32 s26, {D*3*D*2}, s26
    s_mul_i32 s33, s33, 320
    s_mul_i32 s53, s53, s32
    s_add_u32 s53, s53, s33
    v_mul_u32_u24 v3, s32, v3
    v_lshl_add_u32 v126, v4, 7, v3
    s_mov_b32 s22, {S*D*2}
    s_mov_b32 s23, 0x20000
    s_mov_b32 s27, 0x20000
    s_waitcnt lgkmcnt(0)
    s_mov_b32 s20, s4
    s_mov_b32 s21, s5
    s_cmp_ge_u32 s15, 14
    s_cselect_b64 s[24:25], s[10:11], s[8:9]
    s_cmp_lt_u32 s15, 12
    s_cselect_b64 s[24:25], s[6:7], s[24:25]
    {PF1}
    v_lshl_add_u32 v123, v2, 9, v125
    s_lshl_b32 s3, s32, 8
    v_mad_u32_u24 v124, v2, s3, v126
    s_add_u32 s52, s52, 512
    s_add_u32 s53, s53, s3
    s_lshr_b32 s18, s16, 1
    s_and_b32 s19, s16, 1
    v_and_b32 v1, 15, v0
    v_lshrrev_b32 v2, 4, v0
    v_and_b32 v3, 7, v0
    v_xor_b32 v3, v3, v2
    s_lshl_b32 s3, s18, 13
    v_lshlrev_b32 v4, 7, v1
    v_add_u32 v4, s3, v4
    v_lshl_add_u32 v{BXA}, v3, 4, v4
    v_xor_b32 v{BXA+1}, 64, v{BXA}
    v_bfe_u32 v5, v0, 2, 2
    v_and_b32 v6, 3, v0
    v_lshl_add_u32 v5, v2, 3, v5
    v_mul_u32_u24 v5, 320, v5
    v_add_u32 v5, 16384, v5
    s_mov_b32 s34, 8
    s_mov_b32 s35, 32
    s_cmp_lt_u32 s17, 2
    s_cselect_b32 s34, 40, s34
    s_cselect_b32 s35, 8, s35
    s_mul_i32 s36, s19, 160
    v_mul_u32_u24 v6, s34, v6
    v_add_u32 v6, s36, v6
    v_and_b32 v7, 1, v2
    v_lshlrev_b32 v7, 5, v7
    """)
    for t in range(5):
        a(f"""
        v_xor_b32 v8, v6, v7
        v_add_u32 v{BWA+t}, v5, v8
        """)
        if t < 4:
            a(f"v_add_u32 v6, s35, v6")
    a(f"""
    s_mov_b32 s48, 0
    s_mov_b32 s49, 0
    s_lshl_b32 s3, s15, 1
    s_add_u32 s3, s3, s19
    s_cmp_eq_u32 s3, 28
    s_cselect_b32 s48, 0x00010001, s48
    s_cselect_b32 s49, 0x00010001, s49
    v_mov_b32 v{VPAT}, 0xbf803f80
    """)
    for i in range(80):
        a(f"v_mov_b32 v{ACC+i}, 0")
    for i in range(7):
        a(f"v_mov_b32 v{VXA+i}, v{BXA+i}")
    a(f"""
    s_waitcnt lgkmcnt(0)
    s_mov_b32 s28, s12
    s_mov_b32 s29, s13
    s_mov_b32 s30, {WS_SIZE}
    s_mov_b32 s31, 0x20000
    s_mov_b32 s45, 0
    s_mov_b32 s46, 0
    """)
    if cpf == 2: a("s_waitcnt vmcnt(0)"); a(PF)
    stamp(1)
    a("s_barrier")
    stamp(2)
    if cpf == 1: a(PF)
    def reads(st, ks):
        r = []
        for s in range(4):
            if noxr: continue
            r.append(f"ds_read_b128 {vr(SETX[st]+4*s,4)}, v{VXA+ks} offset:{2048*s}")
        for t in (1,2,3,4,0):
            for hf in range(2):
                if nowr: continue
                r.append(f"ds_read_b64_tr_b16 {vr(SETW[st]+4*t+2*hf,2)}, v{VWA+t} offset:{ks*10240+hf*1280}")
        return r
    for l in reads(0, 0): a(l)
    a(f"""
    s_cmp_lt_u32 s17, 2
    s_cbranch_scc0 K1_B_vf
    s_branch K1_B_qk
    """)
    def mfmas(st, qk):
        r = []
        for t in (1,2,3,4,0):
            for s in range(4):
                x = vr(SETX[st]+4*s,4); w = vr(SETW[st]+4*t,4); d = vr(acc(s,t),4)
                if qk: r.append(f"v_mfma_f32_16x16x32_bf16 {d}, {w}, {x}, {d}")
                else:  r.append(f"v_mfma_f32_16x16x32_bf16 {d}, {x}, {w}, {d}")
        return r
    def patch(st):
        return [f"v_cndmask_b32 v{SETW[st]+i}, v{SETW[st]+i}, v{VPAT}, s[48:49]" for i in range(4)]
    def inter(m, others):
        if nocomp: return []
        out = []
        o = list(others)
        for x in m:
            out.append(x)
            if o: out.append(o.pop(0))
        out += o
        return out
    def sched(m, rd, pt, late, barrier):
        if nocomp:
            return (["s_waitcnt lgkmcnt(0)", "s_barrier"] if barrier else []) + list(late)
        out = []
        r = list(rd); l = list(late); p = list(pt)
        nr = len(rd)
        issued = 0
        first = 2 if barrier else 1
        need = {0: 6, 4: 8, 8: 10, 10: 14, 12: 14}
        drained = False
        for i, x in enumerate(m):
            if i in need and not drained and nr == 14:
                out.append(f"s_waitcnt lgkmcnt({min(15, 14 - need[i] + issued)})")
                if need[i] == 14: drained = True
            elif i == 0:
                out.append("s_waitcnt lgkmcnt(0)")
            out.append(x)
            if barrier and i == 1:
                out.append("s_waitcnt lgkmcnt(0)"); out.append("s_barrier"); drained = True
            if i >= first - 1 and r:
                out.append(r.pop(0)); issued += 1
            if i >= 10 and p:
                out.append(p.pop(0))
            if not r and l:
                for _ in range(3):
                    if l: out.append(l.pop(0))
        assert not r and not p
        out += l
        return out
    for qk in (True, False):
        sfx = "qk" if qk else "vf"
        a(f"K1_loop_{sfx}:")
        for l in sched(mfmas(1, qk), reads(0, 0), [] if qk else patch(1), [], True): a(l)
        a(f"""
        s_cmp_eq_u32 s46, 10
        s_cbranch_scc1 K1_done
        K1_B_{sfx}:
        """)
        upd = [f"s_add_u32 s45, s45, {STAGE}", f"s_cmp_eq_u32 s45, {STAGE*NST}", "s_cselect_b32 s45, 0, s45"] + \
              [f"v_add_u32 v{VXA+i}, s45, v{BXA+i}" for i in range(7)] + ["s_add_u32 s46, s46, 1"]
        for l in sched(mfmas(0, qk), reads(1, 1), [] if qk else patch(0), upd, False): a(l)
        a(f"""
        s_branch K1_loop_{sfx}
        """)
    a("K1_done:")
    stamp(3)
    a(f"""
    s_waitcnt lgkmcnt(0)
    v_and_b32 v1, 15, v0
    v_lshrrev_b32 v2, 4, v0
    s_cmp_eq_u32 s17, 2
    s_cbranch_scc1 K1_epV
    s_cmp_eq_u32 s17, 3
    s_cbranch_scc1 K1_epF
    """)
    TQ = [32, 36, 40, 44, 48, 52, 56, 60, 64, 68]
    a(f"""
    s_mov_b32 s34, 81920
    s_mov_b32 s35, 5120
    s_mov_b32 s36, {WS_Q}
    s_cmp_eq_u32 s17, 1
    s_cselect_b32 s34, {KV_HEAD}, s34
    s_cselect_b32 s35, {KV_SUB}, s35
    s_cselect_b32 s36, {WS_KV}, s36
    s_cbranch_scc1 K1_noscale
    s_mov_b32 s38, {f32bits(QSCALE)}
    s_mov_b32 s39, {f32bits(QSCALE)}
    """)
    for i in range(40):
        a(f"v_pk_mul_f32 {vr(ACC+2*i,2)}, {vr(ACC+2*i,2)}, s[38:39]")
    a(f"""
    K1_noscale:
    s_and_b32 s3, s15, 3
    s_lshl_b32 s3, s3, 1
    s_add_u32 s3, s3, s19
    s_lshl_b32 s3, s3, 2
    s_mul_i32 s3, s3, s34
    s_add_u32 s36, s36, s3
    s_mul_i32 s3, s14, s35
    s_add_u32 s36, s36, s3
    s_lshl_b32 s3, s18, 11
    s_add_u32 s37, s36, s3
    s_lshl_b32 s3, s18, 9
    s_add_u32 s38, s36, s3
    s_add_u32 s38, s38, 4096
    v_mul_lo_u32 v3, v2, s34
    v_lshl_add_u32 v3, v1, 4, v3
    """)
    qi = 0
    for s in range(4):
        for ch in range(2):
            q = TQ[qi]; qi += 1
            for k in range(2):
                t = 2*ch + k
                a(f"v_cvt_pk_bf16_f32 v{q+2*k}, v{acc(s,t)}, v{acc(s,t)+1}")
                a(f"v_cvt_pk_bf16_f32 v{q+2*k+1}, v{acc(s,t)+2}, v{acc(s,t)+3}")
            a(f"buffer_store_dwordx4 {vr(q,4)}, v3, s[28:31], s37 offen offset:{(s//2)*1024 + ch*512 + (s%2)*256}")
    for e in range(2):
        q = TQ[qi]; qi += 1
        for k in range(2):
            s = e + 2*k
            a(f"v_cvt_pk_bf16_f32 v{q+2*k}, v{acc(s,4)}, v{acc(s,4)+1}")
            a(f"v_cvt_pk_bf16_f32 v{q+2*k+1}, v{acc(s,4)+2}, v{acc(s,4)+3}")
        a(f"buffer_store_dwordx4 {vr(q,4)}, v3, s[28:31], s38 offen offset:{e*256}")
    stamp(4); dump(5)
    a("s_endpgm")
    a(f"""
    K1_epV:
    s_and_b32 s3, s15, 3
    s_lshl_b32 s3, s3, 1
    s_add_u32 s3, s3, s19
    s_mul_i32 s36, s3, {4*KV_HEAD}
    s_mul_i32 s3, s14, {KV_SUB}
    s_add_u32 s36, s36, s3
    s_mul_i32 s3, s18, {2*VT}
    s_add_u32 s36, s36, s3
    s_add_u32 s36, s36, {WS_KV + 5120}
    s_mov_b32 s34, {KV_HEAD - 20*16}
    v_mul_u32_u24 v3, {VG}, v2
    v_and_b32 v4, 3, v0
    s_mov_b32 s35, {KV_HEAD}
    v_mul_lo_u32 v4, v4, s35
    v_bfe_u32 v5, v0, 2, 3
    v_mul_u32_u24 v5, {VG}, v5
    v_add3_u32 v4, v4, v5, 0
    v_mov_b32 v16, 0x3f803f80
    v_mov_b32 v17, 0x3f803f80
    v_mov_b32 v18, 0x3f803f80
    v_mov_b32 v19, 0x3f803f80
    buffer_store_dwordx4 v[16:19], v4, s[28:31], s36 offen offset:320
    """)
    qi = 0
    for t in range(5):
        a(f"""
        v_add_u32 v4, {16*t}, v1
        v_mul_u32_u24 v5, 3277, v4
        v_lshrrev_b32 v5, 16, v5
        v_lshl_add_u32 v4, v4, 4, v3
        v_mul_lo_u32 v5, v5, s34
        v_add_u32 v{8+t}, v4, v5
        """)
        for tp in range(2):
            q = TQ[qi]; qi += 1
            for k in range(2):
                s = 2*tp + k
                a(f"v_cvt_pk_bf16_f32 v{q+2*k}, v{acc(s,t)}, v{acc(s,t)+1}")
                a(f"v_cvt_pk_bf16_f32 v{q+2*k+1}, v{acc(s,t)+2}, v{acc(s,t)+3}")
            a(f"buffer_store_dwordx4 {vr(q,4)}, v{8+t}, s[28:31], s36 offen offset:{tp*VT}")
    stamp(4); dump(5)
    a("s_endpgm")
    a(f"""
    K1_epF:
    s_and_b32 s3, s15, 1
    s_lshl_b32 s3, s3, 1
    s_add_u32 s3, s3, s19
    s_mul_i32 s34, s3, 80
    s_lshl_b32 s36, s14, 12
    s_lshl_b32 s3, s18, 9
    s_add_u32 s36, s36, s3
    s_add_u32 s36, s36, {WS_AE}
    s_mov_b32 s37, 1.0
    s_mov_b32 s38, 0
    s_cmp_ge_u32 s15, 14
    s_cselect_b32 s37, -1.0, s37
    s_cselect_b32 s38, {WS_BO - WS_AE}, s38
    s_add_u32 s3, s14, s18
    s_cmp_eq_u32 s3, 0
    s_cselect_b32 s40, 0xffff, 0
    s_mov_b32 s41, 0
    v_lshlrev_b32 v3, 10, v2
    v_add_u32 v3, s38, v3
    v_mov_b32 v4, s37
    v_mov_b32 v5, 1.0
    v_cndmask_b32 v5, v4, v5, s[48:49]
    v_cndmask_b32 v6, v4, 0, s[40:41]
    v_cndmask_b32 v7, v5, 0, s[40:41]
    v_add_u32 v13, s34, v1
    """)
    qi = 0
    for t in range(5):
        a(f"""
        v_add_u32 v14, {16*t}, v13
        v_lshrrev_b32 v15, 5, v14
        v_and_b32 v14, 31, v14
        v_lshl_add_u32 v14, v14, 4, v3
        v_lshl_add_u32 v{8+t}, v15, 16, v14
        """)
        if t == 0:
            a(f"""
            v_lshlrev_b32 v14, 10, v2
            v_add_u32 v14, {10*65536}, v14
            v_cndmask_b32 v8, v8, v14, s[48:49]
            """)
        q = TQ[qi]; qi += 1
        F = [72+i for i in range(8)]
        for sp in range(2):
            for r in range(4):
                sp_r0 = (sp == 0 and r == 0)
                mreg = (7 if sp_r0 else 5) if t == 0 else (6 if sp_r0 else 4)
                a(f"v_fma_f32 v{F[4*sp+r]}, v{acc(sp+2,t)+r}, v{mreg}, v{acc(sp,t)+r}")
        for k in range(4):
            a(f"v_cvt_pk_bf16_f32 v{q+k}, v{F[2*k]}, v{F[2*k+1]}")
        a(f"buffer_store_dwordx4 {vr(q,4)}, v{8+t}, s[28:31], s36 offen")
    stamp(4); dump(5)
    if prof: a("s_mov_b64 exec, -1")
    a(f"""
    s_cmp_eq_u32 s40, 0
    s_cbranch_scc1 K1_end
    v_lshlrev_b32 v14, 2, v13
    s_mov_b32 s36, {WS_A1024}
    s_cmp_ge_u32 s15, 14
    s_cbranch_scc1 K1_epF2
    s_mov_b64 exec, 0xffff
    """)
    for t in range(5):
        a(f"buffer_store_dword v{acc(2,t)}, v14, s[28:31], s36 offen offset:{64*t}")
    a(f"""
    s_endpgm
    K1_epF2:
    s_cmp_eq_u32 s48, 0
    s_cbranch_scc1 K1_end
    s_mov_b64 exec, 1
    buffer_store_dword v{acc(2,0)}, v14, s[28:31], s36 offen offset:{320*4}
    K1_end:
    s_endpgm
    """)
    return a.text(), 208

if __name__ == "__main__":
    t, v = gen_k1()
    print(t)
```

```python
from common import *

CH = 2*KV_SUB
NBUF = 4
K2_LDS = CH*NBUF + 1024
WPART = CH//4

def gen_k2(prof=False, nofn=False, nobar=False, noexec=False, nolds=False, prio=0, vmask=True, half=False, fair=1, lastbar=False, **kw):
    a = Asm()
    def stamp(i):
        if prof: a(f"s_memtime s[{60+2*i}:{61+2*i}]")
    def dump(n):
        if prof:
            a(f"""
            s_waitcnt vmcnt(0) lgkmcnt(0)
            s_memtime s[{60+2*n}:{61+2*n}]
            s_memrealtime s[82:83]
            s_mov_b64 exec, 1
            s_lshl_b32 s3, s2, 4
            s_add_u32 s3, s3, s16
            s_lshl_b32 s3, s3, 6
            s_add_u32 s3, s3, {WS_PROF}
            v_mov_b32 v1, s3
            s_waitcnt lgkmcnt(0)
            """)
            for i in range(n+1):
                a(f"v_mov_b32 v2, s{60+2*i}")
                a(f"buffer_store_dword v2, v1, s[28:31], 0 offen offset:{4*i}")
            a("v_mov_b32 v2, s80")
            a("buffer_store_dword v2, v1, s[28:31], 0 offen offset:56")
            a("v_mov_b32 v2, s82")
            a("buffer_store_dword v2, v1, s[28:31], 0 offen offset:60")
    Q1 = 4; W0 = 8; W1 = 14; CB = 20; SS = [36, 52]; P = 68; O = 76
    K1 = [92, 96]; K2 = [100, 104]; V = [108, 116]
    VKA, VKN, VVA, VVN, VKL, VVL = 124, 125, 126, 127, 128, 129
    NV = 136
    q2v = [W0+2, W0, W1+2, W1]
    a(f"""
    s_cmp_ge_u32 s2, 256
    s_cbranch_scc1 K2_end
    s_load_dwordx2 s[12:13], s[0:1], 88
    v_lshrrev_b32 v1, 6, v0
    v_and_b32 v0, 63, v0
    s_and_b32 s18, s2, 7
    s_lshr_b32 s19, s2, 3
    v_readfirstlane_b32 s16, v1
    s_and_b32 s14, s19, 3
    s_lshl_b32 s3, s18, 2
    s_add_u32 s14, s14, s3
    s_lshr_b32 s15, s2, 5
    s_mul_i32 s17, s14, {KV_HEAD}
    s_add_u32 s17, s17, {WS_KV}
    v_lshlrev_b32 v{VKL}, 4, v0
    """)
    if prof: a("s_memrealtime s[80:81]")
    stamp(0)
    a(f"""
    s_mov_b32 s30, {WS_SIZE}
    s_mov_b32 s31, 0x20000
    s_cmp_ge_u32 s16, 8
    s_waitcnt lgkmcnt(0)
    s_mov_b32 s28, s12
    s_mov_b32 s29, s13
    s_cbranch_scc1 K2_bg
    """)
    a(f"""
    ; Q loads
    s_lshr_b32 s3, s16, 2
    s_lshl_b32 s20, s15, 1
    s_add_u32 s20, s20, s3
    s_mul_i32 s20, s20, 5120
    s_mul_i32 s3, s14, 81920
    s_add_u32 s20, s20, s3
    s_and_b32 s21, s16, 3
    s_lshl_b32 s3, s21, 10
    s_add_u32 s22, s20, s3
    s_lshr_b32 s3, s21, 1
    s_lshl_b32 s3, s3, 9
    s_add_u32 s23, s20, s3
    s_and_b32 s3, s21, 1
    s_lshl_b32 s3, s3, 3
    s_add_u32 s23, s23, s3
    s_add_u32 s23, s23, 4096
    v_and_b32 v1, 31, v0
    v_lshlrev_b32 v2, 4, v1
    buffer_load_dwordx4 {vr(Q1,4)}, v{VKL}, s[28:31], s22 offen
    buffer_load_dwordx2 v[{W0+2}:{W0+3}], v2, s[28:31], s23 offen
    v_lshrrev_b32 v3, 5, v0
    v_mul_u32_u24 v3, {VG}, v3
    v_add3_u32 v{VVL}, v2, v3, 0
    v_add_u32 v{VVL}, 5120, v{VVL}
    v_mov_b32 v{VKA}, v{VKL}
    v_mov_b32 v{VVA}, v{VVL}
    v_add_u32 v{VKN}, {CH}, v{VKL}
    v_add_u32 v{VVN}, {CH}, v{VVL}
    s_mov_b32 s42, -1
    s_mov_b32 s43, 0
    s_mov_b32 s45, {CH}
    s_mov_b32 s46, 0
    s_mov_b32 s47, 0
    """)
    a("s_mov_b32 s40, 0x1fffff"); a("s_mov_b32 s41, 0x1fffff")
    for i in (range(16) if vmask else range(12, 16)):
        a(f"v_mov_b32 v{V[0]+i}, 0")
    for i in range(16):
        a(f"v_mov_b32 v{O+i}, 0")
    for i in range(4, 8):
        a(f"v_mov_b32 v{P+i}, 0")
    for r in (W0, W0+1, W0+4, W0+5, W1, W1+1, W1+4, W1+5):
        a(f"v_mov_b32 v{r}, 0")
    stamp(1)
    a(f"""
    s_barrier
    """)
    stamp(2)
    a(f"""
    ds_read_b128 {vr(K1[0],4)}, v{VKA}
    ds_read_b128 {vr(K2[0],4)}, v{VKA} offset:4096
    ds_read_b128 {vr(K1[1],4)}, v{VKA} offset:1024
    {"s_mov_b64 exec, s[40:41]" if vmask else ""}
    ds_read_b128 {vr(V[0],4)}, v{VVA}
    ds_read_b128 {vr(V[0]+4,4)}, v{VVA} offset:{2*VG}
    s_mov_b64 exec, -1
    s_waitcnt vmcnt(0)
    v_cndmask_b32 v{W1+2}, v{W0+2}, 0, s[42:43]
    v_cndmask_b32 v{W1+3}, v{W0+3}, 0, s[42:43]
    v_cndmask_b32 v{W0+2}, 0, v{W0+2}, s[42:43]
    v_cndmask_b32 v{W0+3}, 0, v{W0+3}, s[42:43]
    s_waitcnt lgkmcnt(0)
    v_mfma_f32_32x32x16_bf16 {vr(SS[0],16)}, {vr(K1[0],4)}, {vr(Q1,4)}, 0
    v_mfma_f32_32x32x16_bf16 {vr(SS[0],16)}, {vr(K2[0],4)}, {vr(q2v[0],4)}, {vr(SS[0],16)}
    s_nop 15
    """)
    s0 = SS[0]
    a(f"v_max3_f32 v1, v{s0}, v{s0+1}, v{s0+2}")
    a(f"v_max3_f32 v2, v{s0+3}, v{s0+4}, v{s0+5}")
    a(f"v_max3_f32 v1, v1, v{s0+6}, v{s0+7}")
    a(f"v_max3_f32 v2, v2, v{s0+8}, v{s0+9}")
    a(f"v_max3_f32 v1, v1, v{s0+10}, v{s0+11}")
    a(f"v_max3_f32 v2, v2, v{s0+12}, v{s0+13}")
    a(f"v_max3_f32 v1, v1, v{s0+14}, v{s0+15}")
    a(f"""
    v_max_f32 v1, v1, v2
    v_mov_b32 v2, v1
    s_nop 1
    v_permlane32_swap_b32 v1, v2
    v_max_f32 v1, v1, v2
    v_sub_f32 v{CB}, 0, v1
    """)
    for i in range(1, 16):
        a(f"v_mov_b32 v{CB+i}, v{CB}")
    for i in range(16):
        a(f"v_add_f32 v{s0+i}, v{s0+i}, v{CB}")
    stamp(3)
    a("K2_loop:")
    def koff(t):
        reg = VKA if t < 8 else VKN
        t %= 8
        return reg, (t//4)*KV_SUB + (t%4)*1024
    def voff(t):
        reg = VVA if t < 8 else VVN
        t %= 8
        return reg, (t//4)*KV_SUB + (t%4)*VT
    for i in range(8):
        cur = i % 2; nxt = 1 - cur
        sc = SS[cur]; sn = SS[nxt]
        ex = lambda r: f"v_exp_f32 v{sc+r}, v{sc+r}"
        cv = lambda k: f"v_cvt_pk_bf16_f32 v{P+k}, v{sc+2*k}, v{sc+2*k+1}"
        skip = half and (i % 2 == 1)
        if not skip: a("s_waitcnt lgkmcnt(0)")
        if i == 6 and not nobar:
            a("""
            s_cmp_eq_u32 s46, 7
            s_cbranch_scc1 K2_nobar
            s_barrier
            K2_nobar:
            """)
        if fair == 1 and i % 2 == 0:
            a(f"s_setprio {3 - ((i - 6) % 8)//2}")
        if fair == 2:
            a(f"s_setprio {3 - ((i - 6) % 8) % 4}")
        if fair == 3:
            a(f"s_setprio {3 - (i % 4)}")
        if fair == 4 and i % 2 == 0:
            a(f"s_setprio {3 - i//2}")
        a(f"v_mfma_f32_32x32x16_bf16 {vr(sn,16)}, {vr(K1[nxt],4)}, {vr(Q1,4)}, {vr(CB,16)}")
        r, o = koff(i+2)
        if not nolds and not skip: a(f"ds_read_b128 {vr(K1[cur],4)}, v{r} offset:{o}")
        for k in range(4): a(ex(k))
        a(f"v_mfma_f32_32x32x16_bf16 {vr(O,16)}, {vr(V[nxt]+4,4)}, {vr(P+4,4)}, {vr(O,16)}")
        r, o = voff(i+1)
        if vmask and not skip: a("s_mov_b64 exec, s[40:41]")
        if not nolds and not skip:
            a(f"""
            ds_read_b128 {vr(V[nxt],4)}, v{r} offset:{o}
            ds_read_b128 {vr(V[nxt]+4,4)}, v{r} offset:{o+2*VG}
            """)
        if vmask and not skip: a("s_mov_b64 exec, -1")
        for k in range(4, 8): a(ex(k))
        a(cv(0)); a(cv(1))
        t1 = (i+1) % 8
        a(f"v_mfma_f32_32x32x16_bf16 {vr(sn,16)}, {vr(K2[t1//4],4)}, {vr(q2v[t1%4],4)}, {vr(sn,16)}")
        if (i+2) % 4 == 0:
            r, o = koff(i+2)
            a(f"ds_read_b128 {vr(K2[((i+2)%8)//4],4)}, v{r} offset:{o+4096}")
        a(cv(2)); a(cv(3))
        for k in range(8, 12): a(ex(k))
        a(f"v_mfma_f32_32x32x16_bf16 {vr(O,16)}, {vr(V[cur],4)}, {vr(P,4)}, {vr(O,16)}")
        for k in range(12, 16): a(ex(k))
        for k in range(4, 8): a(cv(k))
    a(f"""
    s_add_u32 s45, s45, {CH}
    s_cmp_eq_u32 s45, {CH*NBUF}
    s_cselect_b32 s45, 0, s45
    v_mov_b32 v{VKA}, v{VKN}
    v_mov_b32 v{VVA}, v{VVN}
    v_add_u32 v{VKN}, s45, v{VKL}
    v_add_u32 v{VVN}, s45, v{VVL}
    s_add_u32 s46, s46, 1
    s_cmp_lt_u32 s46, 8
    s_cbranch_scc1 K2_loop
    v_mfma_f32_32x32x16_bf16 {vr(O,16)}, {vr(V[1]+4,4)}, {vr(P+4,4)}, {vr(O,16)}
    """)
    stamp(4)
    a(f"""
    K2_fin:
    s_lshl_b32 s3, s15, 4
    s_lshl_b32 s20, s16, 1
    s_add_u32 s20, s20, s3
    s_mul_i32 s20, s20, 20480
    s_add_u32 s20, s20, {WS_O}
    s_lshr_b32 s3, s14, 1
    s_lshl_b32 s21, s3, 10
    s_and_b32 s22, s14, 1
    s_lshl_b32 s23, s22, 9
    s_add_u32 s21, s21, s23
    s_add_u32 s21, s21, s20
    s_lshl_b32 s3, s3, 8
    s_lshl_b32 s22, s22, 3
    s_add_u32 s22, s22, s3
    s_add_u32 s22, s22, s20
    s_add_u32 s22, s22, 16384
    v_and_b32 v1, 15, v0
    v_bfe_u32 v2, v0, 4, 1
    v_mul_u32_u24 v2, 20480, v2
    v_lshl_add_u32 v1, v1, 4, v2
    v_lshrrev_b32 v2, 5, v0
    v_lshl_add_u32 v2, v2, 8, v1
    s_nop 3
    v_mov_b32 v{K1[0]}, v{O+8}
    v_mov_b32 v{K1[0]+1}, v{O+8}
    v_max3_f32 v3, |v{O}|, |v{O+1}|, |v{O+2}|
    v_max3_f32 v3, v3, |v{O+3}|, |v{O+4}|
    v_permlane32_swap_b32 v{K1[0]}, v{K1[0]+1}
    v_max3_f32 v3, v3, |v{O+5}|, |v{O+6}|
    v_max3_f32 v3, v3, |v{O+7}|, |v{O+8}|
    v_cndmask_b32 v{K1[1]}, 0, v{O+9}, s[42:43]
    v_cndmask_b32 v{K1[1]+1}, 0, v{O+10}, s[42:43]
    v_cndmask_b32 v{K1[1]+2}, 0, v{O+11}, s[42:43]
    v_rcp_f32 v{K1[0]+2}, v{K1[0]+1}
    v_add_f32 v{K1[1]+3}, v{O}, v{O+1}
    v_max3_f32 v3, v3, |v{K1[1]}|, |v{K1[1]+1}|
    v_max_f32 v3, v3, |v{K1[1]+2}|
    """)
    a(f"""
    s_mov_b32 s3, {f32bits(2.0**100)}
    v_cmp_ngt_f32 vcc, s3, v3
    v_cmp_u_f32 s[24:25], v{O}, v{O+1}
    s_or_b64 vcc, vcc, s[24:25]
    v_cmp_u_f32 s[24:25], v{O+2}, v{O+3}
    s_or_b64 vcc, vcc, s[24:25]
    v_cmp_u_f32 s[24:25], v{O+4}, v{O+5}
    s_or_b64 vcc, vcc, s[24:25]
    v_cmp_u_f32 s[24:25], v{O+6}, v{O+7}
    s_or_b64 vcc, vcc, s[24:25]
    v_cmp_u_f32 s[24:25], v{O+8}, v{K1[1]}
    s_or_b64 vcc, vcc, s[24:25]
    v_cmp_u_f32 s[24:25], v{K1[1]+1}, v{K1[1]+2}
    s_or_b64 vcc, vcc, s[24:25]
    s_cmp_eq_u64 vcc, 0
    s_cbranch_scc1 K2_store
    s_cmp_eq_u32 s47, 0
    s_cbranch_scc1 K2_fallback
    K2_store:
    """)
    R = K1[0]+2
    for i in range(12):
        a(f"v_mul_f32 v{O+i}, v{O+i}, v{R}")
    for k in range(6):
        a(f"v_cvt_pk_bf16_f32 v{P+k}, v{O+2*k}, v{O+2*k+1}")
    a(f"""
    buffer_store_dwordx4 {vr(P,4)}, v2, s[28:31], s21 offen
    s_mov_b64 exec, s[42:43]
    buffer_store_dwordx2 {vr(P+4,2)}, v1, s[28:31], s22 offen
    """)
    stamp(5); dump(6)
    a("s_endpgm")
    a(f"""
    K2_fallback:
    s_mov_b32 s47, 1
    v_mov_b32 v3, 0xff800000
    s_mov_b32 s46, 0
    s_mov_b32 s20, s17
    K2_fbA:
    buffer_load_dwordx4 {vr(K2[0],4)}, v{VKL}, s[28:31], s20 offen offset:4095
    """)
    a.lines.pop()
    a(f"""
    s_add_u32 s21, s20, 4096
    buffer_load_dwordx4 {vr(K2[0],4)}, v{VKL}, s[28:31], s21 offen
    """)
    for t in range(4):
        a(f"""
        buffer_load_dwordx4 {vr(K1[0],4)}, v{VKL}, s[28:31], s20 offen offset:{t*1024}
        s_waitcnt vmcnt(0)
        v_mfma_f32_32x32x16_bf16 {vr(s0,16)}, {vr(K1[0],4)}, {vr(Q1,4)}, 0
        v_mfma_f32_32x32x16_bf16 {vr(s0,16)}, {vr(K2[0],4)}, {vr(q2v[t],4)}, {vr(s0,16)}
        s_nop 15
        """)
        for k in range(8):
            a(f"v_max3_f32 v3, v3, v{s0+2*k}, v{s0+2*k+1}")
    a(f"""
    s_add_u32 s20, s20, {KV_SUB}
    s_add_u32 s46, s46, 1
    s_cmp_lt_u32 s46, 16
    s_cbranch_scc1 K2_fbA
    v_mov_b32 v2, v3
    s_nop 1
    v_permlane32_swap_b32 v3, v2
    v_max_f32 v3, v3, v2
    v_sub_f32 v{CB}, 0, v3
    """)
    for i in range(1, 16):
        a(f"v_mov_b32 v{CB+i}, v{CB}")
    for i in range(16):
        a(f"v_mov_b32 v{O+i}, 0")
    a(f"""
    s_mov_b32 s46, 0
    s_mov_b32 s20, s17
    K2_fbB:
    s_add_u32 s21, s20, 4096
    buffer_load_dwordx4 {vr(K2[0],4)}, v{VKL}, s[28:31], s21 offen
    """)
    for t in range(4):
        a(f"""
        buffer_load_dwordx4 {vr(K1[0],4)}, v{VKL}, s[28:31], s20 offen offset:{t*1024}
        s_add_u32 s21, s20, {t*VT}
        buffer_load_dwordx4 {vr(V[0],4)}, v{VVL}, s[28:31], s21 offen
        buffer_load_dwordx4 {vr(V[0]+4,4)}, v{VVL}, s[28:31], s21 offen offset:{2*VG}
        s_waitcnt vmcnt(0)
        v_mfma_f32_32x32x16_bf16 {vr(s0,16)}, {vr(K1[0],4)}, {vr(Q1,4)}, {vr(CB,16)}
        v_mfma_f32_32x32x16_bf16 {vr(s0,16)}, {vr(K2[0],4)}, {vr(q2v[t],4)}, {vr(s0,16)}
        s_nop 15
        """)
        for k in range(16): a(f"v_exp_f32 v{s0+k}, v{s0+k}")
        a("s_nop 0")
        for k in range(8): a(f"v_cvt_pk_bf16_f32 v{P+k}, v{s0+2*k}, v{s0+2*k+1}")
        a(f"""
        s_nop 1
        v_mfma_f32_32x32x16_bf16 {vr(O,16)}, {vr(V[0],4)}, {vr(P,4)}, {vr(O,16)}
        v_mfma_f32_32x32x16_bf16 {vr(O,16)}, {vr(V[0]+4,4)}, {vr(P+4,4)}, {vr(O,16)}
        s_nop 7
        """)
    a(f"""
    s_add_u32 s20, s20, {KV_SUB}
    s_add_u32 s46, s46, 1
    s_cmp_lt_u32 s46, 16
    s_cbranch_scc1 K2_fbB
    s_branch K2_fin
    """)
    def dma():
        a(f"""
        s_add_u32 m0, s46, s47
        s_add_u32 s3, s45, 4096
        buffer_load_dwordx4 v{VKL}, s[28:31], s45 offen lds
        buffer_load_dwordx4 v{VKL}, s[28:31], s45 offen offset:1024 lds
        buffer_load_dwordx4 v{VKL}, s[28:31], s45 offen offset:2048 lds
        buffer_load_dwordx4 v{VKL}, s[28:31], s45 offen offset:3072 lds
        s_add_u32 m0, m0, 4096
        s_add_u32 s45, s45, {CH}
        buffer_load_dwordx4 v{VKL}, s[28:31], s3 offen lds
        s_mov_b64 exec, 0xff
        buffer_load_dwordx4 v{VKL}, s[28:31], s3 offen offset:1024 lds
        s_mov_b64 exec, -1
        s_add_u32 s47, s47, {CH}
        s_cmp_eq_u32 s47, {CH*NBUF}
        s_cselect_b32 s47, 0, s47
        """)
    ND = 6
    a(f"""
    K2_bg:
    s_sub_u32 s44, s16, 8
    s_mul_i32 s46, s44, {WPART}
    s_add_u32 s45, s17, s46
    s_mov_b32 s47, 0
    """)
    dma()
    a(f"""
    s_setprio {prio}
    s_load_dwordx4 s[4:7], s[0:1], 32
    s_load_dwordx2 s[8:9], s[0:1], 0
    s_load_dwordx2 s[10:11], s[0:1], 16
    s_load_dwordx2 s[32:33], s[0:1], 64
    s_mov_b32 s48, 1
    {"s_branch K2_idle0" if nofn else ""}
    s_cmp_ge_u32 s19, 24
    s_cbranch_scc1 K2_side
    s_cmp_ge_u32 s19, 11
    s_cselect_b32 s20, 1, 0
    s_mul_i32 s3, s20, 11
    s_sub_u32 s21, s19, s3
    s_lshl_b32 s3, s18, 1
    s_add_u32 s20, s20, s3
    s_cmp_lt_u32 s19, 22
    s_cbranch_scc1 K2_fn
    s_mov_b32 s20, 16
    s_sub_u32 s21, s19, 22
    s_lshl_b32 s21, s21, 3
    s_add_u32 s21, s21, s18
    s_cmp_lt_u32 s21, 11
    s_cbranch_scc1 K2_fn
    K2_idle0:
    s_waitcnt vmcnt(0)
    s_barrier
    {"s_endpgm" if nobar else ""}
    """)
    dma(); dma()
    a(f"""
    s_waitcnt vmcnt({ND})
    s_barrier
    K2_idle:
    s_waitcnt vmcnt(0)
    s_cmp_ge_u32 s48, 6
    s_cbranch_scc1 K2_idle2
    """)
    dma()
    a(f"""
    K2_idle2:
    s_barrier
    s_add_u32 s48, s48, 1
    s_cmp_lt_u32 s48, 7
    s_cbranch_scc1 K2_idle
    """)
    dump(1)
    a("s_endpgm")
    AF = 8; BF = 56; AC = 104
    a(f"""
    K2_fn:
    s_and_b32 s22, s44, 1
    s_lshr_b32 s23, s44, 1
    s_lshl_b32 s24, s20, 6
    s_lshl_b32 s3, s23, 5
    s_add_u32 s24, s24, s3
    ; s24 = t0
    v_and_b32 v1, 31, v0
    v_lshrrev_b32 v2, 5, v0
    v_add_u32 v3, s24, v1
    v_lshlrev_b32 v4, 12, v3
    v_lshl_add_u32 v4, v2, 6, v4
    s_lshl_b32 s25, s21, 16
    s_mul_i32 s3, s22, {WS_BO - WS_AE}
    s_add_u32 s25, s25, s3
    s_add_u32 s25, s25, {WS_AE}
    s_mov_b32 s26, 0
    s_lshl_b32 s27, s21, 7
    s_add_u32 s27, s27, {WS_A1024}
    v_lshlrev_b32 v5, 4, v2
    v_lshlrev_b32 v6, 31, v0
    s_waitcnt lgkmcnt(0)
    s_cmp_eq_u32 s22, 1
    s_cselect_b64 s[36:37], s[6:7], s[4:5]
    s_cselect_b64 s[34:35], 0, -1
    s_mov_b32 s38, {S*S*2}
    s_mov_b32 s39, 0x20000
    s_waitcnt vmcnt(0)
    s_barrier
    """)
    dma(); dma()
    for i in range(4):
        a(f"buffer_load_dwordx4 {vr(AC+4*i,4)}, v5, s[28:31], s27 offen offset:{32*i}")
    def fn_load(b):
        for u in range(4):
            a(f"buffer_load_dwordx4 {vr(BF+16*b+4*u,4)}, v4, s[36:39], s26 offen offset:{u*16}")
        for u in range(4):
            a(f"buffer_load_dwordx4 {vr(AF+16*b+4*u,4)}, v{VKL}, s[28:31], s25 offen offset:{u*1024}")
        a("s_add_u32 s25, s25, 4096")
        a("s_add_u32 s26, s26, 128")
    for b in range(2): fn_load(b)
    a(f"""
    s_waitcnt vmcnt(16)
    """)
    for i in range(16):
        a(f"v_xor_b32 v{AC+i}, v{AC+i}, v6")
    for i in range(16):
        a(f"v_cndmask_b32 v{AC+i}, 0, v{AC+i}, s[34:35]")
    a(f"""
    s_barrier
    K2_fnloop:
    s_waitcnt vmcnt(0)
    """)
    for b in range(2):
        for u in range(4):
            a(f"v_mfma_f32_32x32x16_bf16 {vr(AC,16)}, {vr(AF+16*b+4*u,4)}, {vr(BF+16*b+4*u,4)}, {vr(AC,16)}")
    a(f"""
    s_cmp_eq_u32 s48, 8
    s_cbranch_scc1 K2_fn3
    s_cmp_ge_u32 s48, 6
    s_cbranch_scc1 K2_fn2
    """)
    dma()
    a("K2_fn2:")
    fn_load(0); fn_load(1)
    a(f"""
    s_add_u32 s48, s48, 1
    s_cmp_eq_u32 s48, 8
    s_cbranch_scc1 K2_fnloop
    s_barrier
    s_branch K2_fnloop
    K2_fn3:
    s_mov_b32 s34, 0
    s_mov_b32 s35, 0
    s_cmp_eq_u32 s21, 0
    s_cselect_b32 s34, -1, s34
    s_cmp_eq_u32 s21, 10
    s_cselect_b32 s34, -1, s34
    s_cmp_eq_u32 s22, 0
    s_cselect_b32 s34, 0, s34
    v_mul_u32_u24 v3, {YPITCH}, v3
    v_lshl_add_u32 v3, v2, 4, v3
    s_lshl_b32 s3, s21, 7
    s_mul_i32 s25, s22, {WS_YP - WS_YM}
    s_add_u32 s25, s25, s3
    s_add_u32 s25, s25, {WS_YM}
    s_nop 7
    v_cndmask_b32 v{AC}, v{AC}, 0, s[34:35]
    """)
    for i in range(4):
        a(f"buffer_store_dwordx4 {vr(AC+4*i,4)}, v3, s[28:31], s25 offen offset:{32*i}")
    dump(1)
    a("s_endpgm")
    a(f"""
    K2_side:
    s_sub_u32 s20, s19, 24
    s_lshl_b32 s20, s20, 3
    s_add_u32 s20, s20, s18
    s_lshl_b32 s20, s20, 2
    s_add_u32 s20, s20, s44
    ; s20 = zw (0..255)
    v_and_b32 v1, 15, v0
    v_lshrrev_b32 v2, 4, v0
    v_lshlrev_b32 v3, 4, v1
    s_lshl_b32 s3, s20, 3
    v_add_u32 v4, s3, v2
    v_mul_u32_u24 v5, 1280, v4
    v_add_u32 v5, v5, v3
    v_lshlrev_b32 v4, 2, v4
    s_waitcnt lgkmcnt(0)
    s_mov_b32 s36, s8
    s_mov_b32 s37, s9
    s_mov_b32 s38, {S*D*2}
    s_mov_b32 s39, 0x20000
    s_mov_b32 s52, s32
    s_mov_b32 s53, s33
    s_mov_b32 s54, {D*2}
    s_mov_b32 s55, 0x20000
    s_mov_b32 s56, s10
    s_mov_b32 s57, s11
    s_mov_b32 s58, {D*D*2}
    s_mov_b32 s59, 0x20000
    s_mov_b32 s21, {4*1280}
    s_waitcnt vmcnt(0)
    s_barrier
    """)
    dma(); dma()
    GW = 8; XA = 28; XB = 48
    for q in range(5):
        a(f"buffer_load_dwordx4 {vr(GW+4*q,4)}, v3, s[52:55], 0 offen offset:{256*q}")
    for q in range(5):
        a(f"buffer_load_dwordx4 {vr(XA+4*q,4)}, v5, s[36:39], 0 offen offset:{256*q}")
    for q in range(5):
        a(f"buffer_load_dwordx4 {vr(XB+4*q,4)}, v5, s[36:39], s21 offen offset:{256*q}")
    a(f"""
    s_waitcnt vmcnt({ND+15})
    s_barrier
    s_waitcnt vmcnt(0)
    """)
    dma()
    a("v_mov_b32 v70, 0")
    a("v_mov_b32 v71, 0")
    for i in range(20):
        a(f"v_dot2_f32_bf16 v70, v{XA+i}, v{GW+i}, v70")
        a(f"v_dot2_f32_bf16 v71, v{XB+i}, v{GW+i}, v71")
    a("s_nop 3")
    for sh in (8, 4, 2, 1):
        a(f"""
        v_add_f32_dpp v70, v70, v70 row_ror:{sh} row_mask:0xf bank_mask:0xf
        v_add_f32_dpp v71, v71, v71 row_ror:{sh} row_mask:0xf bank_mask:0xf
        s_nop 1
        """)
    a(f"""
    v_mul_f32 v70, {f32bits(-math.log2(math.e))}, v70
    v_mul_f32 v71, {f32bits(-math.log2(math.e))}, v71
    v_exp_f32 v70, v70
    v_exp_f32 v71, v71
    s_nop 0
    v_add_f32 v70, 1.0, v70
    v_add_f32 v71, 1.0, v71
    v_rcp_f32 v70, v70
    v_rcp_f32 v71, v71
    s_mov_b32 s34, 0x00010001
    s_mov_b32 s35, 0x00010001
    s_mov_b32 s3, {WS_G}
    s_mov_b64 exec, s[34:35]
    buffer_store_dword v70, v4, s[28:31], s3 offen
    buffer_store_dword v71, v4, s[28:31], s3 offen offset:16
    s_mov_b64 exec, -1
    s_barrier
    s_mov_b32 s48, 2
    v_lshrrev_b32 v6, 2, v1
    v_lshlrev_b32 v6, 3, v6
    v_and_b32 v7, 3, v1
    v_add_u32 v6, v6, v7
    v_lshrrev_b32 v7, 1, v2
    v_mul_u32_u24 v7, 20, v7
    v_and_b32 v8, 1, v2
    v_lshl_add_u32 v7, v8, 2, v7
    v_mul_u32_u24 v8, 40, v2
    v_add_u32 v8, 16, v8
    K2_wo:
    s_waitcnt vmcnt(0)
    s_cmp_ge_u32 s48, 6
    s_cbranch_scc1 K2_wo2
    """)
    dma()
    a(f"""
    K2_wo2:
    s_cmp_ge_u32 s20, 800
    s_cbranch_scc1 K2_wo3
    s_mul_i32 s21, s20, 3277
    s_lshr_b32 s21, s21, 16
    s_mul_i32 s3, s21, 20
    s_sub_u32 s22, s20, s3
    s_mul_i32 s23, s21, 13108
    s_lshr_b32 s23, s23, 16
    s_mul_i32 s3, s23, 5
    s_sub_u32 s24, s21, s3
    s_mul_i32 s23, s23, 80
    s_lshr_b32 s3, s24, 1
    s_lshl_b32 s3, s3, 5
    s_add_u32 s23, s23, s3
    s_and_b32 s3, s24, 1
    s_lshl_b32 s3, s3, 2
    s_add_u32 s23, s23, s3
    s_cmp_eq_u32 s24, 4
    s_cselect_b64 s[34:35], -1, 0
    v_cndmask_b32 v9, v6, v1, s[34:35]
    v_add_u32 v9, s23, v9
    s_mul_i32 s25, s22, 40
    s_sub_u32 s3, s22, 16
    s_mul_i32 s3, s3, 160
    s_mov_b32 s26, {8*1280}
    s_cmp_ge_u32 s22, 16
    s_cselect_b32 s25, s3, s25
    s_cselect_b32 s26, {20*1280}, s26
    s_cselect_b64 s[34:35], -1, 0
    v_cndmask_b32 v10, v7, v8, s[34:35]
    v_add_u32 v10, s25, v10
    v_mul_u32_u24 v10, 1280, v10
    v_lshl_add_u32 v10, v9, 1, v10
    """)
    for j in range(4):
        a(f"buffer_load_ushort v{12+j}, v10, s[56:59], 0 offen offset:{1280*j}")
    for j in range(4):
        a(f"buffer_load_ushort v{16+j}, v10, s[56:59], s26 offen offset:{1280*j}")
    a(f"""
    s_lshl_b32 s3, s20, 10
    s_add_u32 s3, s3, {WS_WO}
    s_waitcnt vmcnt(0)
    v_lshl_or_b32 v20, v13, 16, v12
    v_lshl_or_b32 v21, v15, 16, v14
    v_lshl_or_b32 v22, v17, 16, v16
    v_lshl_or_b32 v23, v19, 16, v18
    buffer_store_dwordx4 v[20:23], v{VKL}, s[28:31], s3 offen
    s_add_u32 s20, s20, 256
    K2_wo3:
    s_barrier
    s_add_u32 s48, s48, 1
    s_cmp_lt_u32 s48, 7
    s_cbranch_scc1 K2_wo
    """)
    dump(1)
    a(f"""
    K2_end:
    s_endpgm
    """)
    return a.text(), NV

if __name__ == "__main__":
    print(gen_k2()[0])
```

```python
from common import *
K3_LDS = 4*3*5*1024

def gen_k3(prof=False, **kw):
    a = Asm()
    def stamp(i):
        if prof: a(f"s_memtime s[{60+2*i}:{61+2*i}]")
    def dump(n):
        if prof:
            a(f"""
            s_waitcnt vmcnt(0) lgkmcnt(0)
            s_memtime s[{60+2*n}:{61+2*n}]
            s_memrealtime s[82:83]
            s_mov_b64 exec, 1
            s_lshl_b32 s3, s2, 3
            s_add_u32 s3, s3, s16
            s_lshl_b32 s3, s3, 6
            s_add_u32 s3, s3, {WS_PROF}
            v_mov_b32 v1, s3
            s_waitcnt lgkmcnt(0)
            """)
            for i in range(n+1):
                a(f"v_mov_b32 v2, s{60+2*i}")
                a(f"buffer_store_dword v2, v1, s[28:31], 0 offen offset:{4*i}")
            a("v_mov_b32 v2, s80")
            a("buffer_store_dword v2, v1, s[28:31], 0 offen offset:56")
            a("v_mov_b32 v2, s82")
            a("buffer_store_dword v2, v1, s[28:31], 0 offen offset:60")
    OF = 32
    WF = 112
    YR = 212
    Y2 = 232
    GR = 252
    def of(st, s): return OF + (st*4 + s)*4
    def wf(st, t): return WF + (st*5 + t)*4
    def acc(s, t): return (s*5 + t)*4
    a(f"""
    s_cmp_ge_u32 s2, 256
    s_cbranch_scc1 K3_end
    s_load_dwordx2 s[12:13], s[0:1], 88
    s_load_dwordx2 s[10:11], s[0:1], 72
    v_lshrrev_b32 v1, 6, v0
    v_and_b32 v0, 63, v0
    s_and_b32 s18, s2, 7
    s_lshr_b32 s19, s2, 3
    v_readfirstlane_b32 s16, v1
    s_and_b32 s14, s19, 3
    s_lshl_b32 s3, s18, 2
    s_add_u32 s14, s14, s3
    s_lshr_b32 s15, s19, 2
    v_lshlrev_b32 v2, 4, v0
    v_add_u32 v3, 4096, v2
    s_mov_b32 s30, {WS_SIZE}
    s_mov_b32 s31, 0x20000
    """)
    if prof: a("s_memrealtime s[80:81]")
    stamp(0)
    a(f"""
    s_mul_i32 s17, s16, 5120
    s_mul_i32 s20, s14, {4*20480}
    s_add_u32 s20, s20, s17
    s_add_u32 s20, s20, {WS_O}
    """)
    for sl in range(4):
        a(f"""
        s_add_u32 s3, s16, {sl}
        s_and_b32 s{36+sl}, s3, 3
        s_mul_i32 s3, s{36+sl}, 20480
        s_add_u32 s{32+sl}, s20, s3
        """)
    a(f"""
    s_mul_i32 s40, s15, {5*20480}
    s_add_u32 s40, s40, s17
    s_add_u32 s40, s40, {WS_WO}
    s_add_u32 s41, s40, 20480
    s_add_u32 s42, s40, {2*20480}
    s_add_u32 s43, s40, {3*20480}
    s_add_u32 s44, s40, {4*20480}
    s_waitcnt lgkmcnt(0)
    s_mov_b32 s28, s12
    s_mov_b32 s29, s13
    """)
    for st in range(5):
        va, off = ("v2", st*1024) if st < 4 else ("v3", 0)
        for t in range(5):
            a(f"buffer_load_dwordx4 {vr(wf(st,t),4)}, {va}, s[28:31], s{40+t} offen offset:{off}")
            if t < 4:
                a(f"buffer_load_dwordx4 {vr(of(st,t),4)}, {va}, s[28:31], s{32+t} offen offset:{off}")
    a(f"""
    v_and_b32 v4, 15, v0
    v_lshrrev_b32 v5, 4, v0
    s_lshl_b32 s3, s14, 5
    s_and_b32 s21, s16, 1
    s_lshl_b32 s21, s21, 4
    s_add_u32 s3, s3, s21
    v_add_u32 v6, s3, v4
    ; v6 = s_f
    s_lshr_b32 s21, s16, 1
    s_cmp_eq_u32 s21, 1
    s_cselect_b64 s[22:23], -1, 0
    v_cmp_eq_u32 vcc, 0, v6
    s_and_b64 s[24:25], vcc, s[22:23]
    s_andn2_b64 s[26:27], s[22:23], vcc
    v_mov_b32 v7, 1024
    v_cndmask_b32 v7, v6, v7, s[24:25]
    ; v7 = t'
    v_sub_u32 v8, 2048, v6
    v_cndmask_b32 v8, v7, v8, s[26:27]
    s_cmp_ge_u32 s15, 4
    s_cselect_b64 s[22:23], -1, 0
    s_xor_b64 s[26:27], s[26:27], s[22:23]
    v_mov_b32 v9, -1.0
    v_mov_b32 v10, 1.0
    v_cndmask_b32 v24, v9, v10, s[26:27]
    v_mul_u32_u24 v9, {YPITCH}, v7
    s_mov_b32 s51, {WS_YM}
    s_mov_b32 s52, {WS_YP}
    s_mul_i32 s21, s15, 80
    v_lshl_add_u32 v10, v5, 3, s21
    v_lshl_add_u32 v11, v5, 2, s21
    v_add_u32 v11, 64, v11
    s_mov_b32 s46, 0
    s_mov_b32 s47, 4
    s_cmp_ge_u32 s15, 4
    s_cselect_b32 s46, {637*4}, s46
    s_cselect_b32 s47, -4, s47
    v_add_u32 v9, s46, v9
    v_mad_i32_i24 v12, v10, s47, v9
    v_mad_i32_i24 v16, v11, s47, v9
    s_mul_i32 s48, s47, 4
    s_mul_i32 s49, s47, 32
    s_mul_i32 s50, s47, 36
    v_add_u32 v13, s48, v12
    v_add_u32 v14, s49, v12
    v_add_u32 v15, s50, v12
    v_lshlrev_b32 v17, 2, v8
    s_mov_b32 s3, {WS_G}
    """)
    for t in range(5):
        a(f"buffer_load_dwordx4 {vr(YR+4*t,4)}, v{12+t}, s[28:31], s51 offen")
        a(f"buffer_load_dwordx4 {vr(Y2+4*t,4)}, v{12+t}, s[28:31], s52 offen")
    a(f"buffer_load_dword v{GR}, v17, s[28:31], s3 offen")
    a(f"""
    v_mul_u32_u24 v18, 1280, v8
    v_lshl_add_u32 v19, v11, 1, v18
    v_lshl_add_u32 v18, v10, 1, v18
    s_mov_b32 s4, s10
    s_mov_b32 s5, s11
    s_mov_b32 s6, {S*D*2}
    s_mov_b32 s7, 0x20000
    """)
    for sl in range(1, 4):
        a(f"""
        s_mul_i32 s3, s{36+sl}, 15360
        s_add_u32 s3, s3, {(sl-1)*5120}
        v_add_u32 v{20+sl}, s3, v2
        """)
    a(f"""
    s_mul_i32 s3, s16, 15360
    v_add_u32 v20, s3, v2
    """)
    stamp(1)
    for st in range(5):
        a(f"s_waitcnt vmcnt({(4-st)*9 + 11})")
        if st == 0: stamp(2)
        for t in range(5):
            for s in range(4):
                c = "0" if st == 0 else ar(acc(s,t),4)
                a(f"v_mfma_f32_16x16x32_bf16 {ar(acc(s,t),4)}, {vr(wf(st,t),4)}, {vr(of(st,s),4)}, {c}")
    stamp(3)
    a("s_nop 7")
    for sl in range(1, 4):
        for t in range(5):
            a(f"ds_write_b128 v{20+sl}, {ar(acc(sl,t),4)} offset:{t*1024}")
    for i in range(20):
        a(f"v_accvgpr_read_b32 v{OF+i}, a{i}")
    a(f"""
    s_waitcnt lgkmcnt(0)
    s_barrier
    """)
    RD = OF + 20
    for sl in range(3):
        for t in range(5):
            a(f"ds_read_b128 {vr(RD+(sl*5+t)*4,4)}, v20 offset:{sl*5120+t*1024}")
    for sl in range(3):
        a(f"s_waitcnt lgkmcnt({(2-sl)*5})")
        for i in range(20):
            a(f"v_add_f32 v{OF+i}, v{OF+i}, v{RD+sl*20+i}")
    a(f"""
    s_waitcnt vmcnt(0)
    """)
    for i in range(20):
        a(f"v_fma_f32 v{YR+i}, v{Y2+i}, v24, v{YR+i}")
    a(f"""
    s_cmp_ge_u32 s15, 4
    s_cbranch_scc1 K3_mir
    """)
    for mir in (False, True):
        if mir: a("K3_mir:")
        for t in range(5):
            for r in range(4):
                y = YR + 4*t + (3-r if mir else r)
                a(f"v_sub_f32 v{OF+4*t+r}, v{OF+4*t+r}, v{y}")
            for r in range(4):
                y = YR + 4*t + (3-r if mir else r)
                a(f"v_fma_f32 v{OF+4*t+r}, v{OF+4*t+r}, v{GR}, v{y}")
        if not mir: a("s_branch K3_st")
    a("K3_st:")
    for k in range(10):
        a(f"v_cvt_pk_bf16_f32 v{RD+k}, v{OF+2*k}, v{OF+2*k+1}")
    a(f"""
    buffer_store_dwordx4 {vr(RD,4)}, v18, s[4:7], 0 offen
    buffer_store_dwordx4 {vr(RD+4,4)}, v18, s[4:7], 0 offen offset:64
    buffer_store_dwordx2 {vr(RD+8,2)}, v19, s[4:7], 0 offen
    """)
    stamp(4); dump(5)
    a(f"""
    K3_end:
    s_endpgm
    """)
    return a.text(), 256 + 80, 256

if __name__ == "__main__":
    print(gen_k3()[0])
```

```python
import sys, os
sys.path.insert(0, os.path.dirname(__file__))
import gen_all
out = sys.argv[1]
opts = {}
for arg in sys.argv[2:]:
    k, fl = arg.split(":")
    d = {}
    for f in fl.split(","):
        if "=" in f:
            a, b = f.split("="); d[a] = int(b)
        else: d[f] = True
    opts[k] = d
print(gen_all.build(("k1","k2","k3"), out, opts))
```

```python
import math

class Asm:
    def __init__(self):
        self.lines = []
    def __call__(self, s):
        for l in s.strip("\n").split("\n"):
            l = l.strip()
            if not l:
                continue
            if l.endswith(":") and " " not in l:
                self.lines.append(l)
            else:
                self.lines.append("    " + l)
    def label(self, l):
        self.lines.append(l + ":")
    def text(self):
        return "\n".join(self.lines) + "\n"

def vr(a, n=None):
    if n is None or n == 1:
        return f"v{a}"
    return f"v[{a}:{a+n-1}]"
def sr(a, n=None):
    if n is None or n == 1:
        return f"s{a}"
    return f"s[{a}:{a+n-1}]"
def ar(a, n=None):
    if n is None or n == 1:
        return f"a{a}"
    return f"a[{a}:{a+n-1}]"

def f32bits(x):
    import struct
    return struct.unpack("<I", struct.pack("<f", x))[0]

S, D, H, DH = 2048, 640, 32, 20
WS_Q   = 0
WS_KV  = WS_Q + 32*16*5120
KV_SUB = 10496
KV_HEAD = 16*KV_SUB
VT = 1344; VG = 336
WS_AE  = WS_KV + 32*KV_HEAD + 4096
WS_BO  = WS_AE + 11*65536
WS_A1024 = WS_BO + 11*65536
WS_G   = WS_A1024 + 2048
YPITCH = 352*4
WS_YM  = WS_G + 8192
WS_YP  = WS_YM + 1088*YPITCH
WS_O   = WS_YP + 1088*YPITCH
WS_WO  = WS_O + 128*20480
WS_END = WS_WO + 40*20480
WS_PROF = 0x1000000
WS_SIZE = 268435456
QSCALE = (DH ** -0.5) * math.log2(math.e)

def kernel_desc(name, vgpr, sgpr=96, accum=None):
    if accum is None:
        accum = min(256, (vgpr + 3)//4*4)
    return f""".amdhsa_kernel {name}
  .amdhsa_next_free_vgpr {vgpr}
  .amdhsa_next_free_sgpr {sgpr}
  .amdhsa_accum_offset {accum}
  .amdhsa_group_segment_fixed_size 0
  .amdhsa_kernarg_size 96
  .amdhsa_user_sgpr_count 2
  .amdhsa_user_sgpr_kernarg_segment_ptr 1
  .amdhsa_system_sgpr_workgroup_id_x 1
.end_amdhsa_kernel
"""
if __name__ == "__main__":
    for k, v in list(globals().items()):
        if k.startswith("WS_"): print(k, v, hex(v))

def code_prefetch(a, tag, vtmp, vdst, sp=84):
    a(f"""
    s_getpc_b64 s[{sp}:{sp+1}]
    {tag}_pc:
    v_lshlrev_b32 v{vtmp}, 7, v0
    v_min_u32 v{vtmp}, TEXT_END-{tag}_pc-4, v{vtmp}
    global_load_dword v{vdst}, v{vtmp}, s[{sp}:{sp+1}]
    """)
```

```python
from common import *

STAGE = 36864
NST = 4
K1_LDS = STAGE * NST

def gen_k1(prof=False, cpre=True, nocomp=False, noload=False, nopf=True, noxr=False, nowr=False, cpf=0, ld0=2, pfat=0, pf1=1, rot=1):
    a = Asm()
    def stamp(i):
        if prof:
            a(f"s_memtime s[{60+2*i}:{61+2*i}]")
    def dump(n):
        if prof:
            a(f"""
            s_waitcnt vmcnt(0) lgkmcnt(0)
            s_memtime s[{60+2*n}:{61+2*n}]
            s_memrealtime s[82:83]
            s_mov_b64 exec, 1
            s_lshl_b32 s3, s2, 3
            s_add_u32 s3, s3, s59
            s_lshl_b32 s3, s3, 6
            s_add_u32 s3, s3, {WS_PROF}
            v_mov_b32 v1, s3
            s_mov_b32 s28, s12
            s_mov_b32 s29, s13
            s_mov_b32 s30, {WS_SIZE}
            s_mov_b32 s31, 0x20000
            s_waitcnt lgkmcnt(0)
            """)
            for i in range(n+1):
                a(f"v_mov_b32 v2, s{60+2*i}")
                a(f"buffer_store_dword v2, v1, s[28:31], 0 offen offset:{4*i}")
            a("v_mov_b32 v2, s80")
            a("buffer_store_dword v2, v1, s[28:31], 0 offen offset:56")
            a("v_mov_b32 v2, s82")
            a("buffer_store_dword v2, v1, s[28:31], 0 offen offset:60")

    ACC = 128
    def acc(s, t): return ACC + (s*5 + t)*4
    SETX = [32, 68]; SETW = [48, 84]
    VXA = 104; VWA = 106
    BXA = 111; BWA = 113
    VPAT = 118
    a(f"""
    s_cmp_ge_u32 s2, 256
    s_cbranch_scc1 K1_end
    """)
    if cpre: code_prefetch(a, "K1", 2, 127)
    a(f"""
    s_load_dwordx4 s[4:7], s[0:1], 0
    s_load_dwordx4 s[8:11], s[0:1], 48
    s_load_dwordx2 s[12:13], s[0:1], 88
    v_lshrrev_b32 v1, 6, v0
    v_and_b32 v0, 63, v0
    s_and_b32 s18, s2, 7
    s_lshr_b32 s19, s2, 3
    v_readfirstlane_b32 s16, v1
    s_and_b32 s14, s18, 1
    s_lshl_b32 s14, s14, 3
    s_and_b32 s3, s19, 7
    s_add_u32 s14, s14, s3
    s_lshr_b32 s17, s18, 1
    s_lshl_b32 s15, s17, 2
    s_lshr_b32 s3, s19, 3
    s_add_u32 s15, s15, s3
    """)
    if prof: a("s_mov_b32 s59, s16"); a("s_memrealtime s[80:81]")
    stamp(0)
    a(f"""
    s_cmp_ge_u32 s16, 4
    s_cbranch_scc0 K1_compute
    """)
    VX = 8; VW = 12
    a(f"""
    s_sub_u32 s16, s16, 4
    s_mov_b32 s34, 8
    s_mov_b32 s35, 16
    s_mov_b32 s36, 4
    s_cmp_eq_u32 s17, 2
    s_cselect_b32 s34, 16, s34
    s_cselect_b32 s35, 8, s35
    s_cmp_eq_u32 s17, 3
    s_cselect_b32 s34, 16, s34
    s_cselect_b32 s35, 4, s35
    s_cselect_b32 s36, 8, s36
    s_add_u32 s37, s34, s35
    v_lshrrev_b32 v1, 3, v0
    v_and_b32 v2, 3, v1
    v_lshrrev_b32 v3, 5, v0
    v_mad_u32_u24 v4, v3, s36, v2
    v_and_b32 v5, 7, v0
    v_xor_b32 v5, v5, v1
    s_lshl_b32 s38, s14, 6
    s_lshr_b32 s3, s16, 1
    s_lshl_b32 s3, s3, 5
    s_add_u32 s38, s38, s3
    s_sub_u32 s39, 2048, s38
    s_and_b32 s3, s16, 1
    s_cmp_eq_u32 s3, 1
    s_cselect_b32 s38, s39, s38
    s_mov_b32 s40, 1280
    s_cselect_b32 s40, -1280, s40
    s_mul_i32 s38, s38, 1280
    v_mul_i32_i24 v4, s40, v4
    v_lshl_add_u32 v4, v5, 4, v4
    s_mul_i32 s34, s34, s40
    s_mul_i32 s35, s35, s40
    s_mul_i32 s37, s37, s40
    s_add_u32 s34, s34, s38
    s_add_u32 s35, s35, s38
    s_add_u32 s37, s37, s38
    v_add_u32 v{VX}, s38, v4
    v_add_u32 v{VX+1}, s34, v4
    v_add_u32 v{VX+2}, s35, v4
    v_add_u32 v{VX+3}, s37, v4
    v_subrev_u32 v6, {1024*1280}, v{VX}
    v_cmp_le_u32 vcc, {2048*1280}, v{VX}
    s_waitcnt lgkmcnt(0)
    s_mov_b32 s20, s4
    s_mov_b32 s21, s5
    v_cndmask_b32 v{VX}, v{VX}, v6, vcc
    s_mov_b32 s22, {S*D*2}
    s_mov_b32 s23, 0x20000
    s_cmp_ge_u32 s15, 14
    s_cselect_b64 s[24:25], s[10:11], s[8:9]
    s_cmp_lt_u32 s15, 12
    s_cselect_b64 s[24:25], s[6:7], s[24:25]
    s_mov_b32 s26, {D*D*2}
    s_cselect_b32 s26, {D*3*D*2}, s26
    s_mov_b32 s27, 0x20000
    s_mov_b32 s32, 1280
    s_cselect_b32 s32, 3840, s32
    s_and_b32 s3, s15, 1
    s_cselect_b32 s3, s15, s3
    """)
    a.lines.pop(); a.lines.pop()
    a(f"""
    s_and_b32 s33, s15, 1
    s_cmp_lt_u32 s15, 12
    s_cselect_b32 s33, s15, s33
    s_mul_i32 s33, s33, 320
    s_lshl_b32 s44, s32, 6
    s_lshl_b32 s41, s16, 12
    s_mul_i32 s42, s16, 5120
    s_add_u32 s42, s42, 16384
    s_mul_i32 s3, s16, 320
    v_add_u32 v1, s3, v0
    """)
    stamp(1)
    def dmaX(j, base):
        a(f"""
        s_add_u32 m0, {base}, {j*1024}
        s_nop 0
        {"s_nop 0" if noload else f"buffer_load_dwordx4 v{VX+j}, s[20:23], s45 offen lds"}
        """)
    def dmaW(jj, base):
        a(f"""
        s_add_u32 m0, {base}, {jj*1024}
        s_nop 0
        {"s_nop 0" if noload else f"buffer_load_dwordx4 v{VW+jj}, s[24:27], s46 offen lds"}
        """)
    if rot:
        a(f"""
        s_and_b32 s3, s15, 3
        s_mul_i32 s3, s3, 5
        s_lshr_b32 s3, s3, 1
        s_and_b32 s45, s14, 7
        s_add_u32 s45, s45, s3
        s_sub_u32 s3, s45, 10
        s_cmp_ge_u32 s45, 10
        s_cselect_b32 s45, s3, s45
        s_mul_i32 s46, s45, s44
        s_lshl_b32 s45, s45, 7
        """)
    else:
        a("s_mov_b32 s45, 0"); a("s_mov_b32 s46, 0")
    a(f"""
    s_mov_b32 s47, 0
    s_mov_b32 s43, 0
    """)
    for j in range(4): dmaX(j, "s41")
    for jj in range(5):
        a(f"""
        v_add_u32 v2, {64*jj}, v1
        v_mul_u32_u24 v3, 3277, v2
        v_lshrrev_b32 v3, 16, v3
        v_mul_u32_u24 v4, 20, v3
        v_sub_u32 v4, v2, v4
        v_lshrrev_b32 v5, 2, v3
        v_and_b32 v5, 2, v5
        v_xor_b32 v4, v4, v5
        v_lshl_add_u32 v4, v4, 4, s33
        v_mad_u32_u24 v{VW+jj}, v3, s32, v4
        """)
        dmaW(jj, "s42")
    a(f"""
    s_branch K1_ld_next
    K1_ld:
    s_add_u32 s50, s47, s41
    s_add_u32 s51, s47, s42
    """)
    for j in range(4): dmaX(j, "s50")
    for jj in range(5): dmaW(jj, "s51")
    a("K1_ld_next:")
    a(f"""
    s_add_u32 s45, s45, 128
    s_add_u32 s46, s46, s44
    s_cmp_eq_u32 s45, 1280
    s_cselect_b32 s45, 0, s45
    s_cselect_b32 s46, 0, s46
    s_add_u32 s47, s47, {STAGE}
    s_cmp_eq_u32 s47, {STAGE*NST}
    s_cselect_b32 s47, 0, s47
    s_add_u32 s43, s43, 1
    s_cmp_eq_u32 s43, {ld0}
    s_cbranch_scc0 K1_ld_b
    s_waitcnt vmcnt({(ld0-1)*9})
    s_barrier
    K1_ld_b:
    s_cmp_lt_u32 s43, 4
    s_cbranch_scc1 K1_ld
    s_waitcnt vmcnt(18)
    s_barrier
    s_cmp_lt_u32 s43, 10
    s_cbranch_scc1 K1_ld
    s_waitcnt vmcnt(9)
    s_barrier
    s_waitcnt vmcnt(0)
    s_barrier
    """)
    dump(2)
    a("s_endpgm")
    PF = "" if not cpf else """buffer_load_dword v120, v124, s[24:27], s53 offen
    buffer_load_dword v121, v123, s[20:23], s52 offen"""
    PF1 = "" if not (cpf and pf1) else """buffer_load_dword v120, v126, s[24:27], s53 offen
    buffer_load_dword v121, v125, s[20:23], s52 offen"""
    a(f"""
    K1_compute:
    """)
    if cpf: a(f"""
    s_and_b32 s3, s15, 3
    s_lshl_b32 s34, s14, 6
    s_lshl_b32 s35, s3, 5
    s_add_u32 s36, s34, s35
    s_sub_u32 s37, {2048-63-64}, s34
    s_add_u32 s37, s37, s35
    s_cmp_ge_u32 s3, 2
    s_cselect_b32 s36, s37, s36
    s_mul_i32 s52, s36, 1280
    s_lshl_b32 s3, s16, 7
    s_add_u32 s52, s52, s3
    v_and_b32 v1, 31, v0
    v_lshrrev_b32 v2, 5, v0
    v_mul_u32_u24 v125, 1280, v1
    v_mul_u32_u24 v3, 21846, v1
    v_lshrrev_b32 v3, 16, v3
    v_mul_u32_u24 v4, 3, v3
    v_sub_u32 v4, v1, v4
    v_min_u32 v3, 7, v3
    s_and_b32 s3, s14, 7
    s_lshl_b32 s53, s3, 3
    s_lshl_b32 s3, s16, 6
    s_add_u32 s53, s53, s3
    s_mov_b32 s32, 1280
    s_and_b32 s33, s15, 1
    s_mov_b32 s26, {D*D*2}
    s_cmp_lt_u32 s15, 12
    s_cselect_b32 s32, 3840, s32
    s_cselect_b32 s33, s15, s33
    s_cselect_b32 s26, {D*3*D*2}, s26
    s_mul_i32 s33, s33, 320
    s_mul_i32 s53, s53, s32
    s_add_u32 s53, s53, s33
    v_mul_u32_u24 v3, s32, v3
    v_lshl_add_u32 v126, v4, 7, v3
    s_mov_b32 s22, {S*D*2}
    s_mov_b32 s23, 0x20000
    s_mov_b32 s27, 0x20000
    s_waitcnt lgkmcnt(0)
    s_mov_b32 s20, s4
    s_mov_b32 s21, s5
    s_cmp_ge_u32 s15, 14
    s_cselect_b64 s[24:25], s[10:11], s[8:9]
    s_cmp_lt_u32 s15, 12
    s_cselect_b64 s[24:25], s[6:7], s[24:25]
    {PF1}
    v_lshl_add_u32 v123, v2, 9, v125
    s_lshl_b32 s3, s32, 8
    v_mad_u32_u24 v124, v2, s3, v126
    s_add_u32 s52, s52, 512
    s_add_u32 s53, s53, s3
    """)
    a(f"""
    s_lshr_b32 s18, s16, 1
    s_and_b32 s19, s16, 1
    v_and_b32 v1, 15, v0
    v_lshrrev_b32 v2, 4, v0
    v_and_b32 v3, 7, v0
    v_xor_b32 v3, v3, v2
    s_lshl_b32 s3, s18, 13
    v_lshlrev_b32 v4, 7, v1
    v_add_u32 v4, s3, v4
    v_lshl_add_u32 v{BXA}, v3, 4, v4
    v_xor_b32 v{BXA+1}, 64, v{BXA}
    v_bfe_u32 v5, v0, 2, 2
    v_and_b32 v6, 3, v0
    v_lshl_add_u32 v5, v2, 3, v5
    v_mul_u32_u24 v5, 320, v5
    v_add_u32 v5, 16384, v5
    s_mov_b32 s34, 8
    s_mov_b32 s35, 32
    s_cmp_lt_u32 s17, 2
    s_cselect_b32 s34, 40, s34
    s_cselect_b32 s35, 8, s35
    s_mul_i32 s36, s19, 160
    v_mul_u32_u24 v6, s34, v6
    v_add_u32 v6, s36, v6
    v_and_b32 v7, 1, v2
    v_lshlrev_b32 v7, 5, v7
    """)
    for t in range(5):
        a(f"""
        v_xor_b32 v8, v6, v7
        v_add_u32 v{BWA+t}, v5, v8
        """)
        if t < 4:
            a(f"v_add_u32 v6, s35, v6")
    a(f"""
    s_mov_b32 s48, 0
    s_mov_b32 s49, 0
    s_lshl_b32 s3, s15, 1
    s_add_u32 s3, s3, s19
    s_cmp_eq_u32 s3, 28
    s_cselect_b32 s48, 0x00010001, s48
    s_cselect_b32 s49, 0x00010001, s49
    v_mov_b32 v{VPAT}, 0xbf803f80
    """)
    for i in range(80):
        a(f"v_mov_b32 v{ACC+i}, 0")
    for i in range(7):
        a(f"v_mov_b32 v{VXA+i}, v{BXA+i}")
    a(f"""
    s_waitcnt lgkmcnt(0)
    s_mov_b32 s28, s12
    s_mov_b32 s29, s13
    s_mov_b32 s30, {WS_SIZE}
    s_mov_b32 s31, 0x20000
    s_mov_b32 s45, 0
    s_mov_b32 s46, 0
    """)
    if cpf == 2: a("s_waitcnt vmcnt(0)"); a(PF)
    stamp(1)
    a("s_barrier")
    stamp(2)
    if cpf == 1 and pfat == 0: a(PF)
    def reads(st, ks):
        r = []
        for s in range(4):
            if noxr: continue
            r.append(f"ds_read_b128 {vr(SETX[st]+4*s,4)}, v{VXA+ks} offset:{2048*s}")
        for t in (1,2,3,4,0):
            for hf in range(2):
                if nowr: continue
                r.append(f"ds_read_b64_tr_b16 {vr(SETW[st]+4*t+2*hf,2)}, v{VWA+t} offset:{ks*10240+hf*1280}")
        return r
    for l in reads(0, 0): a(l)
    a(f"""
    s_cmp_lt_u32 s17, 2
    s_cbranch_scc0 K1_B_vf
    s_branch K1_B_qk
    """)
    def mfmas(st, qk):
        r = []
        for t in (1,2,3,4,0):
            for s in range(4):
                x = vr(SETX[st]+4*s,4); w = vr(SETW[st]+4*t,4); d = vr(acc(s,t),4)
                if qk: r.append(f"v_mfma_f32_16x16x32_bf16 {d}, {w}, {x}, {d}")
                else:  r.append(f"v_mfma_f32_16x16x32_bf16 {d}, {x}, {w}, {d}")
        return r
    def patch(st):
        return [f"v_cndmask_b32 v{SETW[st]+i}, v{SETW[st]+i}, v{VPAT}, s[48:49]" for i in range(4)]
    def inter(m, others):
        if nocomp: return []
        out = []
        o = list(others)
        for x in m:
            out.append(x)
            if o: out.append(o.pop(0))
        out += o
        return out
    def sched(m, rd, pt, late, barrier):
        if nocomp:
            return (["s_waitcnt lgkmcnt(0)", "s_barrier"] if barrier else []) + list(late)
        out = []
        r = list(rd); l = list(late); p = list(pt)
        nr = len(rd)
        issued = 0
        first = 2 if barrier else 1
        need = {0: 6, 4: 8, 8: 10, 10: 14, 12: 14}
        drained = False
        for i, x in enumerate(m):
            if i in need and not drained and nr == 14:
                out.append(f"s_waitcnt lgkmcnt({min(15, 14 - need[i] + issued)})")
                if need[i] == 14: drained = True
            elif i == 0:
                out.append("s_waitcnt lgkmcnt(0)")
            out.append(x)
            if barrier and i == 1:
                out.append("s_waitcnt lgkmcnt(0)"); out.append("s_barrier"); drained = True
                if cpf == 1 and pfat > 0:
                    out.append(f"s_cmp_lg_u32 s46, {pfat}"); out.append(f"s_cbranch_scc1 K1_npf_{barrier}")
                    out += PF.split("\n"); out.append(f"K1_npf_{barrier}:")
            if i >= first - 1 and r:
                out.append(r.pop(0)); issued += 1
            if i >= 10 and p:
                out.append(p.pop(0))
            if not r and l:
                for _ in range(3):
                    if l: out.append(l.pop(0))
        assert not r and not p
        out += l
        return out
    for qk in (True, False):
        sfx = "qk" if qk else "vf"
        a(f"K1_loop_{sfx}:")
        for l in sched(mfmas(1, qk), reads(0, 0), [] if qk else patch(1), [], sfx): a(l)
        a(f"""
        s_cmp_eq_u32 s46, 10
        s_cbranch_scc1 K1_done
        K1_B_{sfx}:
        """)
        upd = [f"s_add_u32 s45, s45, {STAGE}", f"s_cmp_eq_u32 s45, {STAGE*NST}", "s_cselect_b32 s45, 0, s45"] + \
              [f"v_add_u32 v{VXA+i}, s45, v{BXA+i}" for i in range(7)] + ["s_add_u32 s46, s46, 1"]
        for l in sched(mfmas(0, qk), reads(1, 1), [] if qk else patch(0), upd, False): a(l)
        a(f"""
        s_branch K1_loop_{sfx}
        """)
    a("K1_done:")
    stamp(3)
    a(f"""
    s_waitcnt lgkmcnt(0)
    v_and_b32 v1, 15, v0
    v_lshrrev_b32 v2, 4, v0
    s_cmp_eq_u32 s17, 2
    s_cbranch_scc1 K1_epV
    s_cmp_eq_u32 s17, 3
    s_cbranch_scc1 K1_epF
    """)
    TQ = [32, 36, 40, 44, 48, 52, 56, 60, 64, 68]
    a(f"""
    s_mov_b32 s34, 81920
    s_mov_b32 s35, 5120
    s_mov_b32 s36, {WS_Q}
    s_cmp_eq_u32 s17, 1
    s_cselect_b32 s34, {KV_HEAD}, s34
    s_cselect_b32 s35, {KV_SUB}, s35
    s_cselect_b32 s36, {WS_KV}, s36
    s_cbranch_scc1 K1_noscale
    s_mov_b32 s38, {f32bits(QSCALE)}
    s_mov_b32 s39, {f32bits(QSCALE)}
    """)
    for i in range(40):
        a(f"v_pk_mul_f32 {vr(ACC+2*i,2)}, {vr(ACC+2*i,2)}, s[38:39]")
    a(f"""
    K1_noscale:
    s_and_b32 s3, s15, 3
    s_lshl_b32 s3, s3, 1
    s_add_u32 s3, s3, s19
    s_lshl_b32 s3, s3, 2
    s_mul_i32 s3, s3, s34
    s_add_u32 s36, s36, s3
    s_mul_i32 s3, s14, s35
    s_add_u32 s36, s36, s3
    s_lshl_b32 s3, s18, 11
    s_add_u32 s37, s36, s3
    s_lshl_b32 s3, s18, 9
    s_add_u32 s38, s36, s3
    s_add_u32 s38, s38, 4096
    v_mul_lo_u32 v3, v2, s34
    v_lshl_add_u32 v3, v1, 4, v3
    """)
    qi = 0
    for s in range(4):
        for ch in range(2):
            q = TQ[qi]; qi += 1
            for k in range(2):
                t = 2*ch + k
                a(f"v_cvt_pk_bf16_f32 v{q+2*k}, v{acc(s,t)}, v{acc(s,t)+1}")
                a(f"v_cvt_pk_bf16_f32 v{q+2*k+1}, v{acc(s,t)+2}, v{acc(s,t)+3}")
            a(f"buffer_store_dwordx4 {vr(q,4)}, v3, s[28:31], s37 offen offset:{(s//2)*1024 + ch*512 + (s%2)*256}")
    for e in range(2):
        q = TQ[qi]; qi += 1
        for k in range(2):
            s = e + 2*k
            a(f"v_cvt_pk_bf16_f32 v{q+2*k}, v{acc(s,4)}, v{acc(s,4)+1}")
            a(f"v_cvt_pk_bf16_f32 v{q+2*k+1}, v{acc(s,4)+2}, v{acc(s,4)+3}")
        a(f"buffer_store_dwordx4 {vr(q,4)}, v3, s[28:31], s38 offen offset:{e*256}")
    stamp(4); dump(5)
    a("s_endpgm")
    a(f"""
    K1_epV:
    s_and_b32 s3, s15, 3
    s_lshl_b32 s3, s3, 1
    s_add_u32 s3, s3, s19
    s_mul_i32 s36, s3, {4*KV_HEAD}
    s_mul_i32 s3, s14, {KV_SUB}
    s_add_u32 s36, s36, s3
    s_mul_i32 s3, s18, {2*VT}
    s_add_u32 s36, s36, s3
    s_add_u32 s36, s36, {WS_KV + 5120}
    s_mov_b32 s34, {KV_HEAD - 20*16}
    v_mul_u32_u24 v3, {VG}, v2
    v_and_b32 v4, 3, v0
    s_mov_b32 s35, {KV_HEAD}
    v_mul_lo_u32 v4, v4, s35
    v_bfe_u32 v5, v0, 2, 3
    v_mul_u32_u24 v5, {VG}, v5
    v_add3_u32 v4, v4, v5, 0
    v_mov_b32 v16, 0x3f803f80
    v_mov_b32 v17, 0x3f803f80
    v_mov_b32 v18, 0x3f803f80
    v_mov_b32 v19, 0x3f803f80
    buffer_store_dwordx4 v[16:19], v4, s[28:31], s36 offen offset:320
    """)
    qi = 0
    for t in range(5):
        a(f"""
        v_add_u32 v4, {16*t}, v1
        v_mul_u32_u24 v5, 3277, v4
        v_lshrrev_b32 v5, 16, v5
        v_lshl_add_u32 v4, v4, 4, v3
        v_mul_lo_u32 v5, v5, s34
        v_add_u32 v{8+t}, v4, v5
        """)
        for tp in range(2):
            q = TQ[qi]; qi += 1
            for k in range(2):
                s = 2*tp + k
                a(f"v_cvt_pk_bf16_f32 v{q+2*k}, v{acc(s,t)}, v{acc(s,t)+1}")
                a(f"v_cvt_pk_bf16_f32 v{q+2*k+1}, v{acc(s,t)+2}, v{acc(s,t)+3}")
            a(f"buffer_store_dwordx4 {vr(q,4)}, v{8+t}, s[28:31], s36 offen offset:{tp*VT}")
    stamp(4); dump(5)
    a("s_endpgm")
    a(f"""
    K1_epF:
    s_and_b32 s3, s15, 1
    s_lshl_b32 s3, s3, 1
    s_add_u32 s3, s3, s19
    s_mul_i32 s34, s3, 80
    s_lshl_b32 s36, s14, 12
    s_lshl_b32 s3, s18, 9
    s_add_u32 s36, s36, s3
    s_add_u32 s36, s36, {WS_AE}
    s_mov_b32 s37, 1.0
    s_mov_b32 s38, 0
    s_cmp_ge_u32 s15, 14
    s_cselect_b32 s37, -1.0, s37
    s_cselect_b32 s38, {WS_BO - WS_AE}, s38
    s_add_u32 s3, s14, s18
    s_cmp_eq_u32 s3, 0
    s_cselect_b32 s40, 0xffff, 0
    s_mov_b32 s41, 0
    v_lshlrev_b32 v3, 10, v2
    v_add_u32 v3, s38, v3
    v_mov_b32 v4, s37
    v_mov_b32 v5, 1.0
    v_cndmask_b32 v5, v4, v5, s[48:49]
    v_cndmask_b32 v6, v4, 0, s[40:41]
    v_cndmask_b32 v7, v5, 0, s[40:41]
    v_add_u32 v13, s34, v1
    """)
    qi = 0
    for t in range(5):
        a(f"""
        v_add_u32 v14, {16*t}, v13
        v_lshrrev_b32 v15, 5, v14
        v_and_b32 v14, 31, v14
        v_lshl_add_u32 v14, v14, 4, v3
        v_lshl_add_u32 v{8+t}, v15, 16, v14
        """)
        if t == 0:
            a(f"""
            v_lshlrev_b32 v14, 10, v2
            v_add_u32 v14, {10*65536}, v14
            v_cndmask_b32 v8, v8, v14, s[48:49]
            """)
        q = TQ[qi]; qi += 1
        F = [72+i for i in range(8)]
        for sp in range(2):
            for r in range(4):
                sp_r0 = (sp == 0 and r == 0)
                mreg = (7 if sp_r0 else 5) if t == 0 else (6 if sp_r0 else 4)
                a(f"v_fma_f32 v{F[4*sp+r]}, v{acc(sp+2,t)+r}, v{mreg}, v{acc(sp,t)+r}")
        for k in range(4):
            a(f"v_cvt_pk_bf16_f32 v{q+k}, v{F[2*k]}, v{F[2*k+1]}")
        a(f"buffer_store_dwordx4 {vr(q,4)}, v{8+t}, s[28:31], s36 offen")
    stamp(4); dump(5)
    if prof: a("s_mov_b64 exec, -1")
    a(f"""
    s_cmp_eq_u32 s40, 0
    s_cbranch_scc1 K1_end
    v_lshlrev_b32 v14, 2, v13
    s_mov_b32 s36, {WS_A1024}
    s_cmp_ge_u32 s15, 14
    s_cbranch_scc1 K1_epF2
    s_mov_b64 exec, 0xffff
    """)
    for t in range(5):
        a(f"buffer_store_dword v{acc(2,t)}, v14, s[28:31], s36 offen offset:{64*t}")
    a(f"""
    s_endpgm
    K1_epF2:
    s_cmp_eq_u32 s48, 0
    s_cbranch_scc1 K1_end
    s_mov_b64 exec, 1
    buffer_store_dword v{acc(2,0)}, v14, s[28:31], s36 offen offset:{320*4}
    K1_end:
    s_endpgm
    """)
    return a.text(), 208

if __name__ == "__main__":
    t, v = gen_k1()
    print(t)
```

```python
from common import *

CH = 2*KV_SUB
NBUF = 4
K2_LDS = CH*NBUF + 1024
WPART = CH//4

def gen_k2(prof=False, cpre=True, nofn=False, nobar=False, noexec=False, nolds=False, prio=0, vmask=True, half=False, fair=1, lastbar=False, **kw):
    a = Asm()
    def stamp(i):
        if prof: a(f"s_memtime s[{60+2*i}:{61+2*i}]")
    def dump(n):
        if prof:
            a(f"""
            s_waitcnt vmcnt(0) lgkmcnt(0)
            s_memtime s[{60+2*n}:{61+2*n}]
            s_memrealtime s[82:83]
            s_mov_b64 exec, 1
            s_lshl_b32 s3, s2, 4
            s_add_u32 s3, s3, s16
            s_lshl_b32 s3, s3, 6
            s_add_u32 s3, s3, {WS_PROF}
            v_mov_b32 v1, s3
            s_waitcnt lgkmcnt(0)
            """)
            for i in range(n+1):
                a(f"v_mov_b32 v2, s{60+2*i}")
                a(f"buffer_store_dword v2, v1, s[28:31], 0 offen offset:{4*i}")
            a("v_mov_b32 v2, s80")
            a("buffer_store_dword v2, v1, s[28:31], 0 offen offset:56")
            a("v_mov_b32 v2, s82")
            a("buffer_store_dword v2, v1, s[28:31], 0 offen offset:60")
    Q1 = 4; W0 = 8; W1 = 14; CB = 20; SS = [36, 52]; P = 68; O = 76
    K1 = [92, 96]; K2 = [100, 104]; V = [108, 116]
    VKA, VKN, VVA, VVN, VKL, VVL = 124, 125, 126, 127, 128, 129
    NV = 136
    q2v = [W0+2, W0, W1+2, W1]
    a(f"""
    s_cmp_ge_u32 s2, 256
    s_cbranch_scc1 K2_end
    """)
    if cpre: code_prefetch(a, "K2", 2, 131)
    a(f"""
    s_load_dwordx2 s[12:13], s[0:1], 88
    v_lshrrev_b32 v1, 6, v0
    v_and_b32 v0, 63, v0
    s_and_b32 s18, s2, 7
    s_lshr_b32 s19, s2, 3
    v_readfirstlane_b32 s16, v1
    s_and_b32 s14, s19, 3
    s_lshl_b32 s3, s18, 2
    s_add_u32 s14, s14, s3
    s_lshr_b32 s15, s2, 5
    s_mul_i32 s17, s14, {KV_HEAD}
    s_add_u32 s17, s17, {WS_KV}
    v_lshlrev_b32 v{VKL}, 4, v0
    """)
    if prof: a("s_memrealtime s[80:81]")
    stamp(0)
    a(f"""
    s_mov_b32 s30, {WS_SIZE}
    s_mov_b32 s31, 0x20000
    s_cmp_ge_u32 s16, 8
    s_waitcnt lgkmcnt(0)
    s_mov_b32 s28, s12
    s_mov_b32 s29, s13
    s_cbranch_scc1 K2_bg
    """)
    a(f"""
    ; Q loads
    s_lshr_b32 s3, s16, 2
    s_lshl_b32 s20, s15, 1
    s_add_u32 s20, s20, s3
    s_mul_i32 s20, s20, 5120
    s_mul_i32 s3, s14, 81920
    s_add_u32 s20, s20, s3
    s_and_b32 s21, s16, 3
    s_lshl_b32 s3, s21, 10
    s_add_u32 s22, s20, s3
    s_lshr_b32 s3, s21, 1
    s_lshl_b32 s3, s3, 9
    s_add_u32 s23, s20, s3
    s_and_b32 s3, s21, 1
    s_lshl_b32 s3, s3, 3
    s_add_u32 s23, s23, s3
    s_add_u32 s23, s23, 4096
    v_and_b32 v1, 31, v0
    v_lshlrev_b32 v2, 4, v1
    buffer_load_dwordx4 {vr(Q1,4)}, v{VKL}, s[28:31], s22 offen
    buffer_load_dwordx2 v[{W0+2}:{W0+3}], v2, s[28:31], s23 offen
    v_lshrrev_b32 v3, 5, v0
    v_mul_u32_u24 v3, {VG}, v3
    v_add3_u32 v{VVL}, v2, v3, 0
    v_add_u32 v{VVL}, 5120, v{VVL}
    v_mov_b32 v{VKA}, v{VKL}
    v_mov_b32 v{VVA}, v{VVL}
    v_add_u32 v{VKN}, {CH}, v{VKL}
    v_add_u32 v{VVN}, {CH}, v{VVL}
    s_mov_b32 s42, -1
    s_mov_b32 s43, 0
    s_mov_b32 s45, {CH}
    s_mov_b32 s46, 0
    s_mov_b32 s47, 0
    """)
    a("s_mov_b32 s40, 0x1fffff"); a("s_mov_b32 s41, 0x1fffff")
    for i in (range(16) if vmask else range(12, 16)):
        a(f"v_mov_b32 v{V[0]+i}, 0")
    for i in range(16):
        a(f"v_mov_b32 v{O+i}, 0")
    for i in range(4, 8):
        a(f"v_mov_b32 v{P+i}, 0")
    for r in (W0, W0+1, W0+4, W0+5, W1, W1+1, W1+4, W1+5):
        a(f"v_mov_b32 v{r}, 0")
    stamp(1)
    a(f"""
    s_barrier
    """)
    stamp(2)
    a(f"""
    ds_read_b128 {vr(K1[0],4)}, v{VKA}
    ds_read_b128 {vr(K2[0],4)}, v{VKA} offset:4096
    ds_read_b128 {vr(K1[1],4)}, v{VKA} offset:1024
    {"s_mov_b64 exec, s[40:41]" if vmask else ""}
    ds_read_b128 {vr(V[0],4)}, v{VVA}
    ds_read_b128 {vr(V[0]+4,4)}, v{VVA} offset:{2*VG}
    s_mov_b64 exec, -1
    s_waitcnt vmcnt(0)
    v_cndmask_b32 v{W1+2}, v{W0+2}, 0, s[42:43]
    v_cndmask_b32 v{W1+3}, v{W0+3}, 0, s[42:43]
    v_cndmask_b32 v{W0+2}, 0, v{W0+2}, s[42:43]
    v_cndmask_b32 v{W0+3}, 0, v{W0+3}, s[42:43]
    s_waitcnt lgkmcnt(0)
    v_mfma_f32_32x32x16_bf16 {vr(SS[0],16)}, {vr(K1[0],4)}, {vr(Q1,4)}, 0
    v_mfma_f32_32x32x16_bf16 {vr(SS[0],16)}, {vr(K2[0],4)}, {vr(q2v[0],4)}, {vr(SS[0],16)}
    s_nop 15
    """)
    s0 = SS[0]
    a(f"v_max3_f32 v1, v{s0}, v{s0+1}, v{s0+2}")
    a(f"v_max3_f32 v2, v{s0+3}, v{s0+4}, v{s0+5}")
    a(f"v_max3_f32 v1, v1, v{s0+6}, v{s0+7}")
    a(f"v_max3_f32 v2, v2, v{s0+8}, v{s0+9}")
    a(f"v_max3_f32 v1, v1, v{s0+10}, v{s0+11}")
    a(f"v_max3_f32 v2, v2, v{s0+12}, v{s0+13}")
    a(f"v_max3_f32 v1, v1, v{s0+14}, v{s0+15}")
    a(f"""
    v_max_f32 v1, v1, v2
    v_mov_b32 v2, v1
    s_nop 1
    v_permlane32_swap_b32 v1, v2
    v_max_f32 v1, v1, v2
    v_sub_f32 v{CB}, 0, v1
    """)
    for i in range(1, 16):
        a(f"v_mov_b32 v{CB+i}, v{CB}")
    for i in range(16):
        a(f"v_add_f32 v{s0+i}, v{s0+i}, v{CB}")
    stamp(3)
    a("K2_loop:")
    def koff(t):
        reg = VKA if t < 8 else VKN
        t %= 8
        return reg, (t//4)*KV_SUB + (t%4)*1024
    def voff(t):
        reg = VVA if t < 8 else VVN
        t %= 8
        return reg, (t//4)*KV_SUB + (t%4)*VT
    for i in range(8):
        cur = i % 2; nxt = 1 - cur
        sc = SS[cur]; sn = SS[nxt]
        ex = lambda r: f"v_exp_f32 v{sc+r}, v{sc+r}"
        cv = lambda k: f"v_cvt_pk_bf16_f32 v{P+k}, v{sc+2*k}, v{sc+2*k+1}"
        skip = half and (i % 2 == 1)
        if not skip: a("s_waitcnt lgkmcnt(0)")
        if i == 6 and not nobar:
            a("""
            s_cmp_eq_u32 s46, 7
            s_cbranch_scc1 K2_nobar
            s_barrier
            K2_nobar:
            """)
        if fair == 1 and i % 2 == 0:
            a(f"s_setprio {3 - ((i - 6) % 8)//2}")
        if fair == 2:
            a(f"s_setprio {3 - ((i - 6) % 8) % 4}")
        if fair == 3:
            a(f"s_setprio {3 - (i % 4)}")
        if fair == 4 and i % 2 == 0:
            a(f"s_setprio {3 - i//2}")
        a(f"v_mfma_f32_32x32x16_bf16 {vr(sn,16)}, {vr(K1[nxt],4)}, {vr(Q1,4)}, {vr(CB,16)}")
        r, o = koff(i+2)
        if not nolds and not skip: a(f"ds_read_b128 {vr(K1[cur],4)}, v{r} offset:{o}")
        for k in range(4): a(ex(k))
        a(f"v_mfma_f32_32x32x16_bf16 {vr(O,16)}, {vr(V[nxt]+4,4)}, {vr(P+4,4)}, {vr(O,16)}")
        r, o = voff(i+1)
        if vmask and not skip: a("s_mov_b64 exec, s[40:41]")
        if not nolds and not skip:
            a(f"""
            ds_read_b128 {vr(V[nxt],4)}, v{r} offset:{o}
            ds_read_b128 {vr(V[nxt]+4,4)}, v{r} offset:{o+2*VG}
            """)
        if vmask and not skip: a("s_mov_b64 exec, -1")
        for k in range(4, 8): a(ex(k))
        a(cv(0)); a(cv(1))
        t1 = (i+1) % 8
        a(f"v_mfma_f32_32x32x16_bf16 {vr(sn,16)}, {vr(K2[t1//4],4)}, {vr(q2v[t1%4],4)}, {vr(sn,16)}")
        if (i+2) % 4 == 0:
            r, o = koff(i+2)
            a(f"ds_read_b128 {vr(K2[((i+2)%8)//4],4)}, v{r} offset:{o+4096}")
        a(cv(2)); a(cv(3))
        for k in range(8, 12): a(ex(k))
        a(f"v_mfma_f32_32x32x16_bf16 {vr(O,16)}, {vr(V[cur],4)}, {vr(P,4)}, {vr(O,16)}")
        for k in range(12, 16): a(ex(k))
        for k in range(4, 8): a(cv(k))
    a(f"""
    s_add_u32 s45, s45, {CH}
    s_cmp_eq_u32 s45, {CH*NBUF}
    s_cselect_b32 s45, 0, s45
    v_mov_b32 v{VKA}, v{VKN}
    v_mov_b32 v{VVA}, v{VVN}
    v_add_u32 v{VKN}, s45, v{VKL}
    v_add_u32 v{VVN}, s45, v{VVL}
    s_add_u32 s46, s46, 1
    s_cmp_lt_u32 s46, 8
    s_cbranch_scc1 K2_loop
    v_mfma_f32_32x32x16_bf16 {vr(O,16)}, {vr(V[1]+4,4)}, {vr(P+4,4)}, {vr(O,16)}
    """)
    stamp(4)
    a(f"""
    K2_fin:
    s_lshl_b32 s3, s15, 4
    s_lshl_b32 s20, s16, 1
    s_add_u32 s20, s20, s3
    s_mul_i32 s20, s20, 20480
    s_add_u32 s20, s20, {WS_O}
    s_lshr_b32 s3, s14, 1
    s_lshl_b32 s21, s3, 10
    s_and_b32 s22, s14, 1
    s_lshl_b32 s23, s22, 9
    s_add_u32 s21, s21, s23
    s_add_u32 s21, s21, s20
    s_lshl_b32 s3, s3, 8
    s_lshl_b32 s22, s22, 3
    s_add_u32 s22, s22, s3
    s_add_u32 s22, s22, s20
    s_add_u32 s22, s22, 16384
    v_and_b32 v1, 15, v0
    v_bfe_u32 v2, v0, 4, 1
    v_mul_u32_u24 v2, 20480, v2
    v_lshl_add_u32 v1, v1, 4, v2
    v_lshrrev_b32 v2, 5, v0
    v_lshl_add_u32 v2, v2, 8, v1
    s_nop 3
    v_mov_b32 v{K1[0]}, v{O+8}
    v_mov_b32 v{K1[0]+1}, v{O+8}
    v_max3_f32 v3, |v{O}|, |v{O+1}|, |v{O+2}|
    v_max3_f32 v3, v3, |v{O+3}|, |v{O+4}|
    v_permlane32_swap_b32 v{K1[0]}, v{K1[0]+1}
    v_max3_f32 v3, v3, |v{O+5}|, |v{O+6}|
    v_max3_f32 v3, v3, |v{O+7}|, |v{O+8}|
    v_cndmask_b32 v{K1[1]}, 0, v{O+9}, s[42:43]
    v_cndmask_b32 v{K1[1]+1}, 0, v{O+10}, s[42:43]
    v_cndmask_b32 v{K1[1]+2}, 0, v{O+11}, s[42:43]
    v_rcp_f32 v{K1[0]+2}, v{K1[0]+1}
    v_add_f32 v{K1[1]+3}, v{O}, v{O+1}
    v_max3_f32 v3, v3, |v{K1[1]}|, |v{K1[1]+1}|
    v_max_f32 v3, v3, |v{K1[1]+2}|
    """)
    a(f"""
    s_mov_b32 s3, {f32bits(2.0**100)}
    v_cmp_ngt_f32 vcc, s3, v3
    v_cmp_u_f32 s[24:25], v{O}, v{O+1}
    s_or_b64 vcc, vcc, s[24:25]
    v_cmp_u_f32 s[24:25], v{O+2}, v{O+3}
    s_or_b64 vcc, vcc, s[24:25]
    v_cmp_u_f32 s[24:25], v{O+4}, v{O+5}
    s_or_b64 vcc, vcc, s[24:25]
    v_cmp_u_f32 s[24:25], v{O+6}, v{O+7}
    s_or_b64 vcc, vcc, s[24:25]
    v_cmp_u_f32 s[24:25], v{O+8}, v{K1[1]}
    s_or_b64 vcc, vcc, s[24:25]
    v_cmp_u_f32 s[24:25], v{K1[1]+1}, v{K1[1]+2}
    s_or_b64 vcc, vcc, s[24:25]
    s_cmp_eq_u64 vcc, 0
    s_cbranch_scc1 K2_store
    s_cmp_eq_u32 s47, 0
    s_cbranch_scc1 K2_fallback
    K2_store:
    """)
    R = K1[0]+2
    for i in range(12):
        a(f"v_mul_f32 v{O+i}, v{O+i}, v{R}")
    for k in range(6):
        a(f"v_cvt_pk_bf16_f32 v{P+k}, v{O+2*k}, v{O+2*k+1}")
    a(f"""
    buffer_store_dwordx4 {vr(P,4)}, v2, s[28:31], s21 offen
    s_mov_b64 exec, s[42:43]
    buffer_store_dwordx2 {vr(P+4,2)}, v1, s[28:31], s22 offen
    """)
    stamp(5); dump(6)
    a("s_endpgm")
    a(f"""
    K2_fallback:
    s_mov_b32 s47, 1
    v_mov_b32 v3, 0xff800000
    s_mov_b32 s46, 0
    s_mov_b32 s20, s17
    K2_fbA:
    buffer_load_dwordx4 {vr(K2[0],4)}, v{VKL}, s[28:31], s20 offen offset:4095
    """)
    a.lines.pop()
    a(f"""
    s_add_u32 s21, s20, 4096
    buffer_load_dwordx4 {vr(K2[0],4)}, v{VKL}, s[28:31], s21 offen
    """)
    for t in range(4):
        a(f"""
        buffer_load_dwordx4 {vr(K1[0],4)}, v{VKL}, s[28:31], s20 offen offset:{t*1024}
        s_waitcnt vmcnt(0)
        v_mfma_f32_32x32x16_bf16 {vr(s0,16)}, {vr(K1[0],4)}, {vr(Q1,4)}, 0
        v_mfma_f32_32x32x16_bf16 {vr(s0,16)}, {vr(K2[0],4)}, {vr(q2v[t],4)}, {vr(s0,16)}
        s_nop 15
        """)
        for k in range(8):
            a(f"v_max3_f32 v3, v3, v{s0+2*k}, v{s0+2*k+1}")
    a(f"""
    s_add_u32 s20, s20, {KV_SUB}
    s_add_u32 s46, s46, 1
    s_cmp_lt_u32 s46, 16
    s_cbranch_scc1 K2_fbA
    v_mov_b32 v2, v3
    s_nop 1
    v_permlane32_swap_b32 v3, v2
    v_max_f32 v3, v3, v2
    v_sub_f32 v{CB}, 0, v3
    """)
    for i in range(1, 16):
        a(f"v_mov_b32 v{CB+i}, v{CB}")
    for i in range(16):
        a(f"v_mov_b32 v{O+i}, 0")
    a(f"""
    s_mov_b32 s46, 0
    s_mov_b32 s20, s17
    K2_fbB:
    s_add_u32 s21, s20, 4096
    buffer_load_dwordx4 {vr(K2[0],4)}, v{VKL}, s[28:31], s21 offen
    """)
    for t in range(4):
        a(f"""
        buffer_load_dwordx4 {vr(K1[0],4)}, v{VKL}, s[28:31], s20 offen offset:{t*1024}
        s_add_u32 s21, s20, {t*VT}
        buffer_load_dwordx4 {vr(V[0],4)}, v{VVL}, s[28:31], s21 offen
        buffer_load_dwordx4 {vr(V[0]+4,4)}, v{VVL}, s[28:31], s21 offen offset:{2*VG}
        s_waitcnt vmcnt(0)
        v_mfma_f32_32x32x16_bf16 {vr(s0,16)}, {vr(K1[0],4)}, {vr(Q1,4)}, {vr(CB,16)}
        v_mfma_f32_32x32x16_bf16 {vr(s0,16)}, {vr(K2[0],4)}, {vr(q2v[t],4)}, {vr(s0,16)}
        s_nop 15
        """)
        for k in range(16): a(f"v_exp_f32 v{s0+k}, v{s0+k}")
        a("s_nop 0")
        for k in range(8): a(f"v_cvt_pk_bf16_f32 v{P+k}, v{s0+2*k}, v{s0+2*k+1}")
        a(f"""
        s_nop 1
        v_mfma_f32_32x32x16_bf16 {vr(O,16)}, {vr(V[0],4)}, {vr(P,4)}, {vr(O,16)}
        v_mfma_f32_32x32x16_bf16 {vr(O,16)}, {vr(V[0]+4,4)}, {vr(P+4,4)}, {vr(O,16)}
        s_nop 7
        """)
    a(f"""
    s_add_u32 s20, s20, {KV_SUB}
    s_add_u32 s46, s46, 1
    s_cmp_lt_u32 s46, 16
    s_cbranch_scc1 K2_fbB
    s_branch K2_fin
    """)
    def dma():
        a(f"""
        s_add_u32 m0, s46, s47
        s_add_u32 s3, s45, 4096
        buffer_load_dwordx4 v{VKL}, s[28:31], s45 offen lds
        buffer_load_dwordx4 v{VKL}, s[28:31], s45 offen offset:1024 lds
        buffer_load_dwordx4 v{VKL}, s[28:31], s45 offen offset:2048 lds
        buffer_load_dwordx4 v{VKL}, s[28:31], s45 offen offset:3072 lds
        s_add_u32 m0, m0, 4096
        s_add_u32 s45, s45, {CH}
        buffer_load_dwordx4 v{VKL}, s[28:31], s3 offen lds
        s_mov_b64 exec, 0xff
        buffer_load_dwordx4 v{VKL}, s[28:31], s3 offen offset:1024 lds
        s_mov_b64 exec, -1
        s_add_u32 s47, s47, {CH}
        s_cmp_eq_u32 s47, {CH*NBUF}
        s_cselect_b32 s47, 0, s47
        """)
    ND = 6
    a(f"""
    K2_bg:
    s_sub_u32 s44, s16, 8
    s_mul_i32 s46, s44, {WPART}
    s_add_u32 s45, s17, s46
    s_mov_b32 s47, 0
    """)
    dma()
    a(f"""
    s_setprio {prio}
    s_load_dwordx4 s[4:7], s[0:1], 32
    s_load_dwordx2 s[8:9], s[0:1], 0
    s_load_dwordx2 s[10:11], s[0:1], 16
    s_load_dwordx2 s[32:33], s[0:1], 64
    s_mov_b32 s48, 1
    {"s_branch K2_idle0" if nofn else ""}
    s_cmp_ge_u32 s19, 24
    s_cbranch_scc1 K2_side
    s_cmp_ge_u32 s19, 11
    s_cselect_b32 s20, 1, 0
    s_mul_i32 s3, s20, 11
    s_sub_u32 s21, s19, s3
    s_lshl_b32 s3, s18, 1
    s_add_u32 s20, s20, s3
    s_cmp_lt_u32 s19, 22
    s_cbranch_scc1 K2_fn
    s_mov_b32 s20, 16
    s_sub_u32 s21, s19, 22
    s_lshl_b32 s21, s21, 3
    s_add_u32 s21, s21, s18
    s_cmp_lt_u32 s21, 11
    s_cbranch_scc1 K2_fn
    K2_idle0:
    s_waitcnt vmcnt(0)
    s_barrier
    {"s_endpgm" if nobar else ""}
    """)
    dma(); dma()
    a(f"""
    s_waitcnt vmcnt({ND})
    s_barrier
    K2_idle:
    s_waitcnt vmcnt(0)
    s_cmp_ge_u32 s48, 6
    s_cbranch_scc1 K2_idle2
    """)
    dma()
    a(f"""
    K2_idle2:
    s_barrier
    s_add_u32 s48, s48, 1
    s_cmp_lt_u32 s48, 7
    s_cbranch_scc1 K2_idle
    """)
    dump(1)
    a("s_endpgm")
    AF = 8; BF = 56; AC = 104
    a(f"""
    K2_fn:
    s_and_b32 s22, s44, 1
    s_lshr_b32 s23, s44, 1
    s_lshl_b32 s24, s20, 6
    s_lshl_b32 s3, s23, 5
    s_add_u32 s24, s24, s3
    ; s24 = t0
    v_and_b32 v1, 31, v0
    v_lshrrev_b32 v2, 5, v0
    v_add_u32 v3, s24, v1
    v_lshlrev_b32 v4, 12, v3
    v_lshl_add_u32 v4, v2, 6, v4
    s_lshl_b32 s25, s21, 16
    s_mul_i32 s3, s22, {WS_BO - WS_AE}
    s_add_u32 s25, s25, s3
    s_add_u32 s25, s25, {WS_AE}
    s_mov_b32 s26, 0
    s_lshl_b32 s27, s21, 7
    s_add_u32 s27, s27, {WS_A1024}
    v_lshlrev_b32 v5, 4, v2
    v_lshlrev_b32 v6, 31, v0
    s_waitcnt lgkmcnt(0)
    s_cmp_eq_u32 s22, 1
    s_cselect_b64 s[36:37], s[6:7], s[4:5]
    s_cselect_b64 s[34:35], 0, -1
    s_mov_b32 s38, {S*S*2}
    s_mov_b32 s39, 0x20000
    s_waitcnt vmcnt(0)
    s_barrier
    """)
    dma(); dma()
    for i in range(4):
        a(f"buffer_load_dwordx4 {vr(AC+4*i,4)}, v5, s[28:31], s27 offen offset:{32*i}")
    def fn_load(b):
        for u in range(4):
            a(f"buffer_load_dwordx4 {vr(BF+16*b+4*u,4)}, v4, s[36:39], s26 offen offset:{u*16}")
        for u in range(4):
            a(f"buffer_load_dwordx4 {vr(AF+16*b+4*u,4)}, v{VKL}, s[28:31], s25 offen offset:{u*1024}")
        a("s_add_u32 s25, s25, 4096")
        a("s_add_u32 s26, s26, 128")
    for b in range(2): fn_load(b)
    a(f"""
    s_waitcnt vmcnt(16)
    """)
    for i in range(16):
        a(f"v_xor_b32 v{AC+i}, v{AC+i}, v6")
    for i in range(16):
        a(f"v_cndmask_b32 v{AC+i}, 0, v{AC+i}, s[34:35]")
    a(f"""
    s_barrier
    K2_fnloop:
    s_waitcnt vmcnt(0)
    """)
    for b in range(2):
        for u in range(4):
            a(f"v_mfma_f32_32x32x16_bf16 {vr(AC,16)}, {vr(AF+16*b+4*u,4)}, {vr(BF+16*b+4*u,4)}, {vr(AC,16)}")
    a(f"""
    s_cmp_eq_u32 s48, 8
    s_cbranch_scc1 K2_fn3
    s_cmp_ge_u32 s48, 6
    s_cbranch_scc1 K2_fn2
    """)
    dma()
    a("K2_fn2:")
    fn_load(0); fn_load(1)
    a(f"""
    s_add_u32 s48, s48, 1
    s_cmp_eq_u32 s48, 8
    s_cbranch_scc1 K2_fnloop
    s_barrier
    s_branch K2_fnloop
    K2_fn3:
    s_mov_b32 s34, 0
    s_mov_b32 s35, 0
    s_cmp_eq_u32 s21, 0
    s_cselect_b32 s34, -1, s34
    s_cmp_eq_u32 s21, 10
    s_cselect_b32 s34, -1, s34
    s_cmp_eq_u32 s22, 0
    s_cselect_b32 s34, 0, s34
    v_mul_u32_u24 v3, {YPITCH}, v3
    v_lshl_add_u32 v3, v2, 4, v3
    s_lshl_b32 s3, s21, 7
    s_mul_i32 s25, s22, {WS_YP - WS_YM}
    s_add_u32 s25, s25, s3
    s_add_u32 s25, s25, {WS_YM}
    s_nop 7
    v_cndmask_b32 v{AC}, v{AC}, 0, s[34:35]
    """)
    for i in range(4):
        a(f"buffer_store_dwordx4 {vr(AC+4*i,4)}, v3, s[28:31], s25 offen offset:{32*i}")
    dump(1)
    a("s_endpgm")
    a(f"""
    K2_side:
    s_sub_u32 s20, s19, 24
    s_lshl_b32 s20, s20, 3
    s_add_u32 s20, s20, s18
    s_lshl_b32 s20, s20, 2
    s_add_u32 s20, s20, s44
    ; s20 = zw (0..255)
    v_and_b32 v1, 15, v0
    v_lshrrev_b32 v2, 4, v0
    v_lshlrev_b32 v3, 4, v1
    s_lshl_b32 s3, s20, 3
    v_add_u32 v4, s3, v2
    v_mul_u32_u24 v5, 1280, v4
    v_add_u32 v5, v5, v3
    v_lshlrev_b32 v4, 2, v4
    s_waitcnt lgkmcnt(0)
    s_mov_b32 s36, s8
    s_mov_b32 s37, s9
    s_mov_b32 s38, {S*D*2}
    s_mov_b32 s39, 0x20000
    s_mov_b32 s52, s32
    s_mov_b32 s53, s33
    s_mov_b32 s54, {D*2}
    s_mov_b32 s55, 0x20000
    s_mov_b32 s56, s10
    s_mov_b32 s57, s11
    s_mov_b32 s58, {D*D*2}
    s_mov_b32 s59, 0x20000
    s_mov_b32 s21, {4*1280}
    s_waitcnt vmcnt(0)
    s_barrier
    """)
    dma(); dma()
    GW = 8; XA = 28; XB = 48
    for q in range(5):
        a(f"buffer_load_dwordx4 {vr(GW+4*q,4)}, v3, s[52:55], 0 offen offset:{256*q}")
    for q in range(5):
        a(f"buffer_load_dwordx4 {vr(XA+4*q,4)}, v5, s[36:39], 0 offen offset:{256*q}")
    for q in range(5):
        a(f"buffer_load_dwordx4 {vr(XB+4*q,4)}, v5, s[36:39], s21 offen offset:{256*q}")
    a(f"""
    s_waitcnt vmcnt({ND+15})
    s_barrier
    s_waitcnt vmcnt(0)
    """)
    dma()
    a("v_mov_b32 v70, 0")
    a("v_mov_b32 v71, 0")
    for i in range(20):
        a(f"v_dot2_f32_bf16 v70, v{XA+i}, v{GW+i}, v70")
        a(f"v_dot2_f32_bf16 v71, v{XB+i}, v{GW+i}, v71")
    a("s_nop 3")
    for sh in (8, 4, 2, 1):
        a(f"""
        v_add_f32_dpp v70, v70, v70 row_ror:{sh} row_mask:0xf bank_mask:0xf
        v_add_f32_dpp v71, v71, v71 row_ror:{sh} row_mask:0xf bank_mask:0xf
        s_nop 1
        """)
    a(f"""
    v_mul_f32 v70, {f32bits(-math.log2(math.e))}, v70
    v_mul_f32 v71, {f32bits(-math.log2(math.e))}, v71
    v_exp_f32 v70, v70
    v_exp_f32 v71, v71
    s_nop 0
    v_add_f32 v70, 1.0, v70
    v_add_f32 v71, 1.0, v71
    v_rcp_f32 v70, v70
    v_rcp_f32 v71, v71
    s_mov_b32 s34, 0x00010001
    s_mov_b32 s35, 0x00010001
    s_mov_b32 s3, {WS_G}
    s_mov_b64 exec, s[34:35]
    buffer_store_dword v70, v4, s[28:31], s3 offen
    buffer_store_dword v71, v4, s[28:31], s3 offen offset:16
    s_mov_b64 exec, -1
    s_barrier
    s_mov_b32 s48, 2
    v_lshrrev_b32 v6, 2, v1
    v_lshlrev_b32 v6, 3, v6
    v_and_b32 v7, 3, v1
    v_add_u32 v6, v6, v7
    v_lshrrev_b32 v7, 1, v2
    v_mul_u32_u24 v7, 20, v7
    v_and_b32 v8, 1, v2
    v_lshl_add_u32 v7, v8, 2, v7
    v_mul_u32_u24 v8, 40, v2
    v_add_u32 v8, 16, v8
    K2_wo:
    s_waitcnt vmcnt(0)
    s_cmp_ge_u32 s48, 6
    s_cbranch_scc1 K2_wo2
    """)
    dma()
    a(f"""
    K2_wo2:
    s_cmp_ge_u32 s20, 800
    s_cbranch_scc1 K2_wo3
    s_mul_i32 s21, s20, 3277
    s_lshr_b32 s21, s21, 16
    s_mul_i32 s3, s21, 20
    s_sub_u32 s22, s20, s3
    s_mul_i32 s23, s21, 13108
    s_lshr_b32 s23, s23, 16
    s_mul_i32 s3, s23, 5
    s_sub_u32 s24, s21, s3
    s_mul_i32 s23, s23, 80
    s_lshr_b32 s3, s24, 1
    s_lshl_b32 s3, s3, 5
    s_add_u32 s23, s23, s3
    s_and_b32 s3, s24, 1
    s_lshl_b32 s3, s3, 2
    s_add_u32 s23, s23, s3
    s_cmp_eq_u32 s24, 4
    s_cselect_b64 s[34:35], -1, 0
    v_cndmask_b32 v9, v6, v1, s[34:35]
    v_add_u32 v9, s23, v9
    s_mul_i32 s25, s22, 40
    s_sub_u32 s3, s22, 16
    s_mul_i32 s3, s3, 160
    s_mov_b32 s26, {8*1280}
    s_cmp_ge_u32 s22, 16
    s_cselect_b32 s25, s3, s25
    s_cselect_b32 s26, {20*1280}, s26
    s_cselect_b64 s[34:35], -1, 0
    v_cndmask_b32 v10, v7, v8, s[34:35]
    v_add_u32 v10, s25, v10
    v_mul_u32_u24 v10, 1280, v10
    v_lshl_add_u32 v10, v9, 1, v10
    """)
    for j in range(4):
        a(f"buffer_load_ushort v{12+j}, v10, s[56:59], 0 offen offset:{1280*j}")
    for j in range(4):
        a(f"buffer_load_ushort v{16+j}, v10, s[56:59], s26 offen offset:{1280*j}")
    a(f"""
    s_lshl_b32 s3, s20, 10
    s_add_u32 s3, s3, {WS_WO}
    s_waitcnt vmcnt(0)
    v_lshl_or_b32 v20, v13, 16, v12
    v_lshl_or_b32 v21, v15, 16, v14
    v_lshl_or_b32 v22, v17, 16, v16
    v_lshl_or_b32 v23, v19, 16, v18
    buffer_store_dwordx4 v[20:23], v{VKL}, s[28:31], s3 offen
    s_add_u32 s20, s20, 256
    K2_wo3:
    s_barrier
    s_add_u32 s48, s48, 1
    s_cmp_lt_u32 s48, 7
    s_cbranch_scc1 K2_wo
    """)
    dump(1)
    a(f"""
    K2_end:
    s_endpgm
    """)
    return a.text(), NV

if __name__ == "__main__":
    print(gen_k2()[0])
```

```python
from common import *
K3_LDS = 4*3*5*1024

def gen_k3(prof=False, cpre=True, **kw):
    a = Asm()
    def stamp(i):
        if prof: a(f"s_memtime s[{60+2*i}:{61+2*i}]")
    def dump(n):
        if prof:
            a(f"""
            s_waitcnt vmcnt(0) lgkmcnt(0)
            s_memtime s[{60+2*n}:{61+2*n}]
            s_memrealtime s[82:83]
            s_mov_b64 exec, 1
            s_lshl_b32 s3, s2, 3
            s_add_u32 s3, s3, s16
            s_lshl_b32 s3, s3, 6
            s_add_u32 s3, s3, {WS_PROF}
            v_mov_b32 v1, s3
            s_waitcnt lgkmcnt(0)
            """)
            for i in range(n+1):
                a(f"v_mov_b32 v2, s{60+2*i}")
                a(f"buffer_store_dword v2, v1, s[28:31], 0 offen offset:{4*i}")
            a("v_mov_b32 v2, s80")
            a("buffer_store_dword v2, v1, s[28:31], 0 offen offset:56")
            a("v_mov_b32 v2, s82")
            a("buffer_store_dword v2, v1, s[28:31], 0 offen offset:60")
    OF = 32
    WF = 112
    YR = 212
    Y2 = 232
    GR = 252
    def of(st, s): return OF + (st*4 + s)*4
    def wf(st, t): return WF + (st*5 + t)*4
    def acc(s, t): return (s*5 + t)*4
    a(f"""
    s_cmp_ge_u32 s2, 256
    s_cbranch_scc1 K3_end
    """)
    if cpre: code_prefetch(a, "K3", 4, 253)
    a(f"""
    s_load_dwordx2 s[12:13], s[0:1], 88
    s_load_dwordx2 s[10:11], s[0:1], 72
    v_lshrrev_b32 v1, 6, v0
    v_and_b32 v0, 63, v0
    s_and_b32 s18, s2, 7
    s_lshr_b32 s19, s2, 3
    v_readfirstlane_b32 s16, v1
    s_and_b32 s14, s19, 3
    s_lshl_b32 s3, s18, 2
    s_add_u32 s14, s14, s3
    s_lshr_b32 s15, s19, 2
    v_lshlrev_b32 v2, 4, v0
    v_add_u32 v3, 4096, v2
    s_mov_b32 s30, {WS_SIZE}
    s_mov_b32 s31, 0x20000
    """)
    if prof: a("s_memrealtime s[80:81]")
    stamp(0)
    a(f"""
    s_mul_i32 s17, s16, 5120
    s_mul_i32 s20, s14, {4*20480}
    s_add_u32 s20, s20, s17
    s_add_u32 s20, s20, {WS_O}
    """)
    for sl in range(4):
        a(f"""
        s_add_u32 s3, s16, {sl}
        s_and_b32 s{36+sl}, s3, 3
        s_mul_i32 s3, s{36+sl}, 20480
        s_add_u32 s{32+sl}, s20, s3
        """)
    a(f"""
    s_mul_i32 s40, s15, {5*20480}
    s_add_u32 s40, s40, s17
    s_add_u32 s40, s40, {WS_WO}
    s_add_u32 s41, s40, 20480
    s_add_u32 s42, s40, {2*20480}
    s_add_u32 s43, s40, {3*20480}
    s_add_u32 s44, s40, {4*20480}
    s_waitcnt lgkmcnt(0)
    s_mov_b32 s28, s12
    s_mov_b32 s29, s13
    """)
    for st in range(5):
        va, off = ("v2", st*1024) if st < 4 else ("v3", 0)
        for t in range(5):
            a(f"buffer_load_dwordx4 {vr(wf(st,t),4)}, {va}, s[28:31], s{40+t} offen offset:{off}")
            if t < 4:
                a(f"buffer_load_dwordx4 {vr(of(st,t),4)}, {va}, s[28:31], s{32+t} offen offset:{off}")
    a(f"""
    v_and_b32 v4, 15, v0
    v_lshrrev_b32 v5, 4, v0
    s_lshl_b32 s3, s14, 5
    s_and_b32 s21, s16, 1
    s_lshl_b32 s21, s21, 4
    s_add_u32 s3, s3, s21
    v_add_u32 v6, s3, v4
    ; v6 = s_f
    s_lshr_b32 s21, s16, 1
    s_cmp_eq_u32 s21, 1
    s_cselect_b64 s[22:23], -1, 0
    v_cmp_eq_u32 vcc, 0, v6
    s_and_b64 s[24:25], vcc, s[22:23]
    s_andn2_b64 s[26:27], s[22:23], vcc
    v_mov_b32 v7, 1024
    v_cndmask_b32 v7, v6, v7, s[24:25]
    ; v7 = t'
    v_sub_u32 v8, 2048, v6
    v_cndmask_b32 v8, v7, v8, s[26:27]
    s_cmp_ge_u32 s15, 4
    s_cselect_b64 s[22:23], -1, 0
    s_xor_b64 s[26:27], s[26:27], s[22:23]
    v_mov_b32 v9, -1.0
    v_mov_b32 v10, 1.0
    v_cndmask_b32 v24, v9, v10, s[26:27]
    v_mul_u32_u24 v9, {YPITCH}, v7
    s_mov_b32 s51, {WS_YM}
    s_mov_b32 s52, {WS_YP}
    s_mul_i32 s21, s15, 80
    v_lshl_add_u32 v10, v5, 3, s21
    v_lshl_add_u32 v11, v5, 2, s21
    v_add_u32 v11, 64, v11
    s_mov_b32 s46, 0
    s_mov_b32 s47, 4
    s_cmp_ge_u32 s15, 4
    s_cselect_b32 s46, {637*4}, s46
    s_cselect_b32 s47, -4, s47
    v_add_u32 v9, s46, v9
    v_mad_i32_i24 v12, v10, s47, v9
    v_mad_i32_i24 v16, v11, s47, v9
    s_mul_i32 s48, s47, 4
    s_mul_i32 s49, s47, 32
    s_mul_i32 s50, s47, 36
    v_add_u32 v13, s48, v12
    v_add_u32 v14, s49, v12
    v_add_u32 v15, s50, v12
    v_lshlrev_b32 v17, 2, v8
    s_mov_b32 s3, {WS_G}
    """)
    for t in range(5):
        a(f"buffer_load_dwordx4 {vr(YR+4*t,4)}, v{12+t}, s[28:31], s51 offen")
        a(f"buffer_load_dwordx4 {vr(Y2+4*t,4)}, v{12+t}, s[28:31], s52 offen")
    a(f"buffer_load_dword v{GR}, v17, s[28:31], s3 offen")
    a(f"""
    v_mul_u32_u24 v18, 1280, v8
    v_lshl_add_u32 v19, v11, 1, v18
    v_lshl_add_u32 v18, v10, 1, v18
    s_mov_b32 s4, s10
    s_mov_b32 s5, s11
    s_mov_b32 s6, {S*D*2}
    s_mov_b32 s7, 0x20000
    """)
    for sl in range(1, 4):
        a(f"""
        s_mul_i32 s3, s{36+sl}, 15360
        s_add_u32 s3, s3, {(sl-1)*5120}
        v_add_u32 v{20+sl}, s3, v2
        """)
    a(f"""
    s_mul_i32 s3, s16, 15360
    v_add_u32 v20, s3, v2
    """)
    stamp(1)
    for st in range(5):
        a(f"s_waitcnt vmcnt({(4-st)*9 + 11})")
        if st == 0: stamp(2)
        for t in range(5):
            for s in range(4):
                c = "0" if st == 0 else ar(acc(s,t),4)
                a(f"v_mfma_f32_16x16x32_bf16 {ar(acc(s,t),4)}, {vr(wf(st,t),4)}, {vr(of(st,s),4)}, {c}")
    stamp(3)
    a("s_nop 7")
    for sl in range(1, 4):
        for t in range(5):
            a(f"ds_write_b128 v{20+sl}, {ar(acc(sl,t),4)} offset:{t*1024}")
    for i in range(20):
        a(f"v_accvgpr_read_b32 v{OF+i}, a{i}")
    a(f"""
    s_waitcnt lgkmcnt(0)
    s_barrier
    """)
    RD = OF + 20
    for sl in range(3):
        for t in range(5):
            a(f"ds_read_b128 {vr(RD+(sl*5+t)*4,4)}, v20 offset:{sl*5120+t*1024}")
    for sl in range(3):
        a(f"s_waitcnt lgkmcnt({(2-sl)*5})")
        for i in range(20):
            a(f"v_add_f32 v{OF+i}, v{OF+i}, v{RD+sl*20+i}")
    a(f"""
    s_waitcnt vmcnt(0)
    """)
    for i in range(20):
        a(f"v_fma_f32 v{YR+i}, v{Y2+i}, v24, v{YR+i}")
    a(f"""
    s_cmp_ge_u32 s15, 4
    s_cbranch_scc1 K3_mir
    """)
    for mir in (False, True):
        if mir: a("K3_mir:")
        for t in range(5):
            for r in range(4):
                y = YR + 4*t + (3-r if mir else r)
                a(f"v_sub_f32 v{OF+4*t+r}, v{OF+4*t+r}, v{y}")
            for r in range(4):
                y = YR + 4*t + (3-r if mir else r)
                a(f"v_fma_f32 v{OF+4*t+r}, v{OF+4*t+r}, v{GR}, v{y}")
        if not mir: a("s_branch K3_st")
    a("K3_st:")
    for k in range(10):
        a(f"v_cvt_pk_bf16_f32 v{RD+k}, v{OF+2*k}, v{OF+2*k+1}")
    a(f"""
    buffer_store_dwordx4 {vr(RD,4)}, v18, s[4:7], 0 offen
    buffer_store_dwordx4 {vr(RD+4,4)}, v18, s[4:7], 0 offen offset:64
    buffer_store_dwordx2 {vr(RD+8,2)}, v19, s[4:7], 0 offen
    """)
    stamp(4); dump(5)
    a(f"""
    K3_end:
    s_endpgm
    """)
    return a.text(), 256 + 80, 256

if __name__ == "__main__":
    print(gen_k3()[0])
```

```python
from common import *

STAGE = 36864
NST = 4
K1_LDS = STAGE * NST

def gen_k1(prof=False, pbase=0, cpre=True, nocomp=False, noload=False, nopf=True, noxr=False, nowr=False, cpf=0, ld0=2, pfat=0, pf1=1, rot=1):
    a = Asm()
    def stamp(i):
        if prof:
            a(f"s_memtime s[{60+2*i}:{61+2*i}]")
    def dump(n):
        if prof:
            a(f"""
            s_waitcnt vmcnt(0) lgkmcnt(0)
            s_memtime s[{60+2*n}:{61+2*n}]
            s_memrealtime s[82:83]
            s_mov_b64 exec, 1
            s_lshl_b32 s3, s2, 3
            s_add_u32 s3, s3, s79
            s_lshl_b32 s3, s3, 6
            s_add_u32 s3, s3, {WS_PROF + pbase}
            v_mov_b32 v1, s3
            s_mov_b32 s28, s12
            s_mov_b32 s29, s13
            s_mov_b32 s30, {WS_SIZE}
            s_mov_b32 s31, 0x20000
            s_waitcnt lgkmcnt(0)
            """)
            for i in range(n+1):
                a(f"v_mov_b32 v2, s{60+2*i}")
                a(f"buffer_store_dword v2, v1, s[28:31], 0 offen offset:{4*i}")
            a("v_mov_b32 v2, s80")
            a("buffer_store_dword v2, v1, s[28:31], 0 offen offset:56")
            a("v_mov_b32 v2, s82")
            a("buffer_store_dword v2, v1, s[28:31], 0 offen offset:60")

    ACC = 128
    def acc(s, t): return ACC + (s*5 + t)*4
    SETX = [32, 68]; SETW = [48, 84]
    VXA = 104; VWA = 106
    BXA = 111; BWA = 113
    VPAT = 118
    a(f"""
    s_cmp_ge_u32 s2, 256
    s_cbranch_scc1 K1_end
    """)
    if cpre: code_prefetch(a, "K1", 2, 127)
    a(f"""
    s_load_dwordx4 s[4:7], s[0:1], 0
    s_load_dwordx4 s[8:11], s[0:1], 48
    s_load_dwordx2 s[12:13], s[0:1], 88
    s_load_dwordx2 s[56:57], s[0:1], 16
    v_lshrrev_b32 v1, 6, v0
    v_and_b32 v0, 63, v0
    s_and_b32 s18, s2, 7
    s_lshr_b32 s19, s2, 3
    v_readfirstlane_b32 s16, v1
    s_and_b32 s14, s18, 1
    s_lshl_b32 s14, s14, 3
    s_and_b32 s3, s19, 7
    s_add_u32 s14, s14, s3
    s_lshr_b32 s17, s18, 1
    s_lshl_b32 s15, s17, 2
    s_lshr_b32 s3, s19, 3
    s_add_u32 s15, s15, s3
    """)
    if prof: a("s_mov_b32 s79, s16"); a("s_memrealtime s[80:81]")
    stamp(0)
    a(f"""
    s_cmp_ge_u32 s16, 4
    s_cbranch_scc0 K1_compute
    """)
    VX = 8; VW = 12
    a(f"""
    s_sub_u32 s16, s16, 4
    s_mov_b32 s34, 8
    s_mov_b32 s35, 16
    s_mov_b32 s36, 4
    s_cmp_eq_u32 s17, 2
    s_cselect_b32 s34, 16, s34
    s_cselect_b32 s35, 8, s35
    s_cmp_eq_u32 s17, 3
    s_cselect_b32 s34, 16, s34
    s_cselect_b32 s35, 4, s35
    s_cselect_b32 s36, 8, s36
    s_add_u32 s37, s34, s35
    v_lshrrev_b32 v1, 3, v0
    v_and_b32 v2, 3, v1
    v_lshrrev_b32 v3, 5, v0
    v_mad_u32_u24 v4, v3, s36, v2
    v_and_b32 v5, 7, v0
    v_xor_b32 v5, v5, v1
    s_lshl_b32 s38, s14, 6
    s_lshr_b32 s3, s16, 1
    s_lshl_b32 s3, s3, 5
    s_add_u32 s38, s38, s3
    s_sub_u32 s39, 2048, s38
    s_and_b32 s3, s16, 1
    s_cmp_eq_u32 s3, 1
    s_cselect_b32 s38, s39, s38
    s_mov_b32 s40, 1280
    s_cselect_b32 s40, -1280, s40
    s_mul_i32 s38, s38, 1280
    v_mul_i32_i24 v4, s40, v4
    v_lshl_add_u32 v4, v5, 4, v4
    s_mul_i32 s34, s34, s40
    s_mul_i32 s35, s35, s40
    s_mul_i32 s37, s37, s40
    s_add_u32 s34, s34, s38
    s_add_u32 s35, s35, s38
    s_add_u32 s37, s37, s38
    v_add_u32 v{VX}, s38, v4
    v_add_u32 v{VX+1}, s34, v4
    v_add_u32 v{VX+2}, s35, v4
    v_add_u32 v{VX+3}, s37, v4
    v_subrev_u32 v6, {1024*1280}, v{VX}
    v_cmp_le_u32 vcc, {2048*1280}, v{VX}
    s_waitcnt lgkmcnt(0)
    s_mov_b32 s20, s4
    s_mov_b32 s21, s5
    v_cndmask_b32 v{VX}, v{VX}, v6, vcc
    s_mov_b32 s22, {S*D*2}
    s_mov_b32 s23, 0x20000
    s_cmp_ge_u32 s15, 14
    s_cselect_b64 s[24:25], s[10:11], s[8:9]
    s_cmp_lt_u32 s15, 12
    s_cselect_b64 s[24:25], s[6:7], s[24:25]
    s_mov_b32 s26, {D*D*2}
    s_cselect_b32 s26, {D*3*D*2}, s26
    s_mov_b32 s27, 0x20000
    s_mov_b32 s32, 1280
    s_cselect_b32 s32, 3840, s32
    s_and_b32 s3, s15, 1
    s_cselect_b32 s3, s15, s3
    """)
    a.lines.pop(); a.lines.pop()
    a(f"""
    s_and_b32 s33, s15, 1
    s_cmp_lt_u32 s15, 12
    s_cselect_b32 s33, s15, s33
    s_mul_i32 s33, s33, 320
    s_lshl_b32 s44, s32, 6
    s_lshl_b32 s41, s16, 12
    s_mul_i32 s42, s16, 5120
    s_add_u32 s42, s42, 16384
    s_mul_i32 s3, s16, 320
    v_add_u32 v1, s3, v0
    """)
    stamp(1)
    def dmaX(j, base):
        a(f"""
        s_add_u32 m0, {base}, {j*1024}
        s_nop 0
        {"s_nop 0" if noload else f"buffer_load_dwordx4 v{VX+j}, s[20:23], s45 offen lds"}
        """)
    def dmaW(jj, base):
        a(f"""
        s_add_u32 m0, {base}, {jj*1024}
        s_nop 0
        {"s_nop 0" if noload else f"buffer_load_dwordx4 v{VW+jj}, s[24:27], s46 offen lds"}
        """)
    if rot:
        a(f"""
        s_and_b32 s3, s15, 3
        s_mul_i32 s3, s3, 5
        s_lshr_b32 s3, s3, 1
        s_and_b32 s45, s14, 7
        s_add_u32 s45, s45, s3
        s_sub_u32 s3, s45, 10
        s_cmp_ge_u32 s45, 10
        s_cselect_b32 s45, s3, s45
        s_mul_i32 s46, s45, s44
        s_lshl_b32 s45, s45, 7
        """)
    else:
        a("s_mov_b32 s45, 0"); a("s_mov_b32 s46, 0")
    a(f"""
    s_mov_b32 s47, 0
    s_mov_b32 s43, 0
    """)
    for j in range(4): dmaX(j, "s41")
    for jj in range(5):
        a(f"""
        v_add_u32 v2, {64*jj}, v1
        v_mul_u32_u24 v3, 3277, v2
        v_lshrrev_b32 v3, 16, v3
        v_mul_u32_u24 v4, 20, v3
        v_sub_u32 v4, v2, v4
        v_lshrrev_b32 v5, 2, v3
        v_and_b32 v5, 2, v5
        v_xor_b32 v4, v4, v5
        v_lshl_add_u32 v4, v4, 4, s33
        v_mad_u32_u24 v{VW+jj}, v3, s32, v4
        """)
        dmaW(jj, "s42")
    a(f"""
    s_mul_i32 s52, s2, 3277
    s_lshr_b32 s52, s52, 16
    s_mul_i32 s3, s52, 20
    s_sub_u32 s53, s2, s3
    s_lshl_b32 s52, s52, 2
    s_add_u32 s52, s52, s16
    v_and_b32 v2, 15, v0
    v_lshrrev_b32 v3, 4, v0
    v_lshrrev_b32 v4, 1, v3
    v_mul_u32_u24 v4, 20, v4
    v_and_b32 v5, 1, v3
    v_lshl_add_u32 v4, v5, 2, v4
    v_mul_u32_u24 v5, 40, v3
    v_add_u32 v5, 16, v5
    s_mul_i32 s54, s53, 40
    s_sub_u32 s3, s53, 16
    s_mul_i32 s3, s3, 160
    s_mov_b32 s55, {8*1280}
    s_cmp_ge_u32 s53, 16
    s_cselect_b32 s54, s3, s54
    s_cselect_b32 s55, {20*1280}, s55
    s_cselect_b64 s[34:35], -1, 0
    v_cndmask_b32 v4, v4, v5, s[34:35]
    v_add_u32 v4, s54, v4
    v_mul_u32_u24 v4, 1280, v4
    v_lshl_add_u32 v4, v2, 1, v4
    s_lshl_b32 s54, s52, 5
    s_add_u32 s55, s55, s54
    s_mov_b32 s58, {D*D*2}
    s_cmp_ge_u32 s2, 200
    s_cselect_b32 s58, 0, s58
    s_mov_b32 s59, 0x20000
    """)
    for j in range(4):
        a(f"buffer_load_ushort v{24+j}, v4, s[56:59], s54 offen offset:{1280*j}")
    for j in range(4):
        a(f"buffer_load_ushort v{28+j}, v4, s[56:59], s55 offen offset:{1280*j}")
    a(f"""
    s_branch K1_ld_next
    K1_ld:
    s_add_u32 s50, s47, s41
    s_add_u32 s51, s47, s42
    """)
    for j in range(4): dmaX(j, "s50")
    for jj in range(5): dmaW(jj, "s51")
    a("K1_ld_next:")
    a(f"""
    s_add_u32 s45, s45, 128
    s_add_u32 s46, s46, s44
    s_cmp_eq_u32 s45, 1280
    s_cselect_b32 s45, 0, s45
    s_cselect_b32 s46, 0, s46
    s_add_u32 s47, s47, {STAGE}
    s_cmp_eq_u32 s47, {STAGE*NST}
    s_cselect_b32 s47, 0, s47
    s_add_u32 s43, s43, 1
    s_cmp_eq_u32 s43, {ld0}
    s_cbranch_scc0 K1_ld_b
    s_waitcnt vmcnt({(ld0-1)*9 + 8})
    s_barrier
    K1_ld_b:
    s_cmp_lt_u32 s43, 4
    s_cbranch_scc1 K1_ld
    s_waitcnt vmcnt(18)
    s_barrier
    s_cmp_lt_u32 s43, 10
    s_cbranch_scc1 K1_ld
    s_waitcnt vmcnt(9)
    s_barrier
    s_waitcnt vmcnt(0)
    s_barrier
    s_cmp_ge_u32 s2, 200
    s_cbranch_scc1 K1_ld_end
    s_mul_i32 s3, s52, 20
    s_add_u32 s3, s3, s53
    s_lshl_b32 s3, s3, 10
    s_add_u32 s3, s3, {WS_WO}
    s_mov_b32 s28, s12
    s_mov_b32 s29, s13
    s_mov_b32 s30, {WS_SIZE}
    s_mov_b32 s31, 0x20000
    v_lshl_or_b32 v32, v25, 16, v24
    v_lshl_or_b32 v33, v27, 16, v26
    v_lshl_or_b32 v34, v29, 16, v28
    v_lshl_or_b32 v35, v31, 16, v30
    v_lshlrev_b32 v2, 4, v0
    buffer_store_dwordx4 v[32:35], v2, s[28:31], s3 offen
    K1_ld_end:
    """)
    dump(2)
    a("s_endpgm")
    PF = "" if not cpf else """buffer_load_dword v120, v124, s[24:27], s53 offen
    buffer_load_dword v121, v123, s[20:23], s52 offen"""
    PF1 = "" if not (cpf and pf1) else """buffer_load_dword v120, v126, s[24:27], s53 offen
    buffer_load_dword v121, v125, s[20:23], s52 offen"""
    a(f"""
    K1_compute:
    """)
    if cpf: a(f"""
    s_and_b32 s3, s15, 3
    s_lshl_b32 s34, s14, 6
    s_lshl_b32 s35, s3, 5
    s_add_u32 s36, s34, s35
    s_sub_u32 s37, {2048-63-64}, s34
    s_add_u32 s37, s37, s35
    s_cmp_ge_u32 s3, 2
    s_cselect_b32 s36, s37, s36
    s_mul_i32 s52, s36, 1280
    s_lshl_b32 s3, s16, 7
    s_add_u32 s52, s52, s3
    v_and_b32 v1, 31, v0
    v_lshrrev_b32 v2, 5, v0
    v_mul_u32_u24 v125, 1280, v1
    v_mul_u32_u24 v3, 21846, v1
    v_lshrrev_b32 v3, 16, v3
    v_mul_u32_u24 v4, 3, v3
    v_sub_u32 v4, v1, v4
    v_min_u32 v3, 7, v3
    s_and_b32 s3, s14, 7
    s_lshl_b32 s53, s3, 3
    s_lshl_b32 s3, s16, 6
    s_add_u32 s53, s53, s3
    s_mov_b32 s32, 1280
    s_and_b32 s33, s15, 1
    s_mov_b32 s26, {D*D*2}
    s_cmp_lt_u32 s15, 12
    s_cselect_b32 s32, 3840, s32
    s_cselect_b32 s33, s15, s33
    s_cselect_b32 s26, {D*3*D*2}, s26
    s_mul_i32 s33, s33, 320
    s_mul_i32 s53, s53, s32
    s_add_u32 s53, s53, s33
    v_mul_u32_u24 v3, s32, v3
    v_lshl_add_u32 v126, v4, 7, v3
    s_mov_b32 s22, {S*D*2}
    s_mov_b32 s23, 0x20000
    s_mov_b32 s27, 0x20000
    s_waitcnt lgkmcnt(0)
    s_mov_b32 s20, s4
    s_mov_b32 s21, s5
    s_cmp_ge_u32 s15, 14
    s_cselect_b64 s[24:25], s[10:11], s[8:9]
    s_cmp_lt_u32 s15, 12
    s_cselect_b64 s[24:25], s[6:7], s[24:25]
    {PF1}
    v_lshl_add_u32 v123, v2, 9, v125
    s_lshl_b32 s3, s32, 8
    v_mad_u32_u24 v124, v2, s3, v126
    s_add_u32 s52, s52, 512
    s_add_u32 s53, s53, s3
    """)
    a(f"""
    s_lshr_b32 s18, s16, 1
    s_and_b32 s19, s16, 1
    v_and_b32 v1, 15, v0
    v_lshrrev_b32 v2, 4, v0
    v_and_b32 v3, 7, v0
    v_xor_b32 v3, v3, v2
    s_lshl_b32 s3, s18, 13
    v_lshlrev_b32 v4, 7, v1
    v_add_u32 v4, s3, v4
    v_lshl_add_u32 v{BXA}, v3, 4, v4
    v_xor_b32 v{BXA+1}, 64, v{BXA}
    v_bfe_u32 v5, v0, 2, 2
    v_and_b32 v6, 3, v0
    v_lshl_add_u32 v5, v2, 3, v5
    v_mul_u32_u24 v5, 320, v5
    v_add_u32 v5, 16384, v5
    s_mov_b32 s34, 8
    s_mov_b32 s35, 32
    s_cmp_lt_u32 s17, 2
    s_cselect_b32 s34, 40, s34
    s_cselect_b32 s35, 8, s35
    s_mul_i32 s36, s19, 160
    v_mul_u32_u24 v6, s34, v6
    v_add_u32 v6, s36, v6
    v_and_b32 v7, 1, v2
    v_lshlrev_b32 v7, 5, v7
    """)
    for t in range(5):
        a(f"""
        v_xor_b32 v8, v6, v7
        v_add_u32 v{BWA+t}, v5, v8
        """)
        if t < 4:
            a(f"v_add_u32 v6, s35, v6")
    a(f"""
    s_mov_b32 s48, 0
    s_mov_b32 s49, 0
    s_lshl_b32 s3, s15, 1
    s_add_u32 s3, s3, s19
    s_cmp_eq_u32 s3, 28
    s_cselect_b32 s48, 0x00010001, s48
    s_cselect_b32 s49, 0x00010001, s49
    v_mov_b32 v{VPAT}, 0xbf803f80
    """)
    for i in range(80):
        a(f"v_mov_b32 v{ACC+i}, 0")
    for i in range(7):
        a(f"v_mov_b32 v{VXA+i}, v{BXA+i}")
    a(f"""
    s_waitcnt lgkmcnt(0)
    s_mov_b32 s28, s12
    s_mov_b32 s29, s13
    s_mov_b32 s30, {WS_SIZE}
    s_mov_b32 s31, 0x20000
    s_mov_b32 s45, 0
    s_mov_b32 s46, 0
    """)
    if cpf == 2: a("s_waitcnt vmcnt(0)"); a(PF)
    stamp(1)
    a("s_barrier")
    stamp(2)
    if cpf == 1 and pfat == 0: a(PF)
    def reads(st, ks):
        r = []
        for s in range(4):
            if noxr: continue
            r.append(f"ds_read_b128 {vr(SETX[st]+4*s,4)}, v{VXA+ks} offset:{2048*s}")
        for t in (1,2,3,4,0):
            for hf in range(2):
                if nowr: continue
                r.append(f"ds_read_b64_tr_b16 {vr(SETW[st]+4*t+2*hf,2)}, v{VWA+t} offset:{ks*10240+hf*1280}")
        return r
    for l in reads(0, 0): a(l)
    a(f"""
    s_cmp_lt_u32 s17, 2
    s_cbranch_scc0 K1_B_vf
    s_branch K1_B_qk
    """)
    def mfmas(st, qk):
        r = []
        for t in (1,2,3,4,0):
            for s in range(4):
                x = vr(SETX[st]+4*s,4); w = vr(SETW[st]+4*t,4); d = vr(acc(s,t),4)
                if qk: r.append(f"v_mfma_f32_16x16x32_bf16 {d}, {w}, {x}, {d}")
                else:  r.append(f"v_mfma_f32_16x16x32_bf16 {d}, {x}, {w}, {d}")
        return r
    def patch(st):
        return [f"v_cndmask_b32 v{SETW[st]+i}, v{SETW[st]+i}, v{VPAT}, s[48:49]" for i in range(4)]
    def inter(m, others):
        if nocomp: return []
        out = []
        o = list(others)
        for x in m:
            out.append(x)
            if o: out.append(o.pop(0))
        out += o
        return out
    def sched(m, rd, pt, late, barrier):
        if nocomp:
            return (["s_waitcnt lgkmcnt(0)", "s_barrier"] if barrier else []) + list(late)
        out = []
        r = list(rd); l = list(late); p = list(pt)
        nr = len(rd)
        issued = 0
        first = 2 if barrier else 1
        need = {0: 6, 4: 8, 8: 10, 10: 14, 12: 14}
        drained = False
        for i, x in enumerate(m):
            if i in need and not drained and nr == 14:
                out.append(f"s_waitcnt lgkmcnt({min(15, 14 - need[i] + issued)})")
                if need[i] == 14: drained = True
            elif i == 0:
                out.append("s_waitcnt lgkmcnt(0)")
            out.append(x)
            if barrier and i == 1:
                out.append("s_waitcnt lgkmcnt(0)"); out.append("s_barrier"); drained = True
                if cpf == 1 and pfat > 0:
                    out.append(f"s_cmp_lg_u32 s46, {pfat}"); out.append(f"s_cbranch_scc1 K1_npf_{barrier}")
                    out += PF.split("\n"); out.append(f"K1_npf_{barrier}:")
            if i >= first - 1 and r:
                out.append(r.pop(0)); issued += 1
            if i >= 10 and p:
                out.append(p.pop(0))
            if not r and l:
                for _ in range(3):
                    if l: out.append(l.pop(0))
        assert not r and not p
        out += l
        return out
    for qk in (True, False):
        sfx = "qk" if qk else "vf"
        a(f"K1_loop_{sfx}:")
        for l in sched(mfmas(1, qk), reads(0, 0), [] if qk else patch(1), [], sfx): a(l)
        a(f"""
        s_cmp_eq_u32 s46, 10
        s_cbranch_scc1 K1_done
        K1_B_{sfx}:
        """)
        upd = [f"s_add_u32 s45, s45, {STAGE}", f"s_cmp_eq_u32 s45, {STAGE*NST}", "s_cselect_b32 s45, 0, s45"] + \
              [f"v_add_u32 v{VXA+i}, s45, v{BXA+i}" for i in range(7)] + ["s_add_u32 s46, s46, 1"]
        for l in sched(mfmas(0, qk), reads(1, 1), [] if qk else patch(0), upd, False): a(l)
        a(f"""
        s_branch K1_loop_{sfx}
        """)
    a("K1_done:")
    stamp(3)
    a(f"""
    s_waitcnt lgkmcnt(0)
    v_and_b32 v1, 15, v0
    v_lshrrev_b32 v2, 4, v0
    s_cmp_eq_u32 s17, 2
    s_cbranch_scc1 K1_epV
    s_cmp_eq_u32 s17, 3
    s_cbranch_scc1 K1_epF
    """)
    TQ = [32, 36, 40, 44, 48, 52, 56, 60, 64, 68]
    a(f"""
    s_mov_b32 s34, 81920
    s_mov_b32 s35, 5120
    s_mov_b32 s36, {WS_Q}
    s_cmp_eq_u32 s17, 1
    s_cselect_b32 s34, {KV_HEAD}, s34
    s_cselect_b32 s35, {KV_SUB}, s35
    s_cselect_b32 s36, {WS_KV}, s36
    s_cbranch_scc1 K1_noscale
    s_mov_b32 s38, {f32bits(QSCALE)}
    s_mov_b32 s39, {f32bits(QSCALE)}
    """)
    for i in range(40):
        a(f"v_pk_mul_f32 {vr(ACC+2*i,2)}, {vr(ACC+2*i,2)}, s[38:39]")
    a(f"""
    K1_noscale:
    s_and_b32 s3, s15, 3
    s_lshl_b32 s3, s3, 1
    s_add_u32 s3, s3, s19
    s_lshl_b32 s3, s3, 2
    s_mul_i32 s3, s3, s34
    s_add_u32 s36, s36, s3
    s_mul_i32 s3, s14, s35
    s_add_u32 s36, s36, s3
    s_lshl_b32 s3, s18, 11
    s_add_u32 s37, s36, s3
    s_lshl_b32 s3, s18, 9
    s_add_u32 s38, s36, s3
    s_add_u32 s38, s38, 4096
    v_mul_lo_u32 v3, v2, s34
    v_lshl_add_u32 v3, v1, 4, v3
    """)
    qi = 0
    for s in range(4):
        for ch in range(2):
            q = TQ[qi]; qi += 1
            for k in range(2):
                t = 2*ch + k
                a(f"v_cvt_pk_bf16_f32 v{q+2*k}, v{acc(s,t)}, v{acc(s,t)+1}")
                a(f"v_cvt_pk_bf16_f32 v{q+2*k+1}, v{acc(s,t)+2}, v{acc(s,t)+3}")
            a(f"buffer_store_dwordx4 {vr(q,4)}, v3, s[28:31], s37 offen offset:{(s//2)*1024 + ch*512 + (s%2)*256}")
    for e in range(2):
        q = TQ[qi]; qi += 1
        for k in range(2):
            s = e + 2*k
            a(f"v_cvt_pk_bf16_f32 v{q+2*k}, v{acc(s,4)}, v{acc(s,4)+1}")
            a(f"v_cvt_pk_bf16_f32 v{q+2*k+1}, v{acc(s,4)+2}, v{acc(s,4)+3}")
        a(f"buffer_store_dwordx4 {vr(q,4)}, v3, s[28:31], s38 offen offset:{e*256}")
    stamp(4); dump(5)
    a("s_endpgm")
    a(f"""
    K1_epV:
    s_and_b32 s3, s15, 3
    s_lshl_b32 s3, s3, 1
    s_add_u32 s3, s3, s19
    s_mul_i32 s36, s3, {4*KV_HEAD}
    s_mul_i32 s3, s14, {KV_SUB}
    s_add_u32 s36, s36, s3
    s_mul_i32 s3, s18, {2*VT}
    s_add_u32 s36, s36, s3
    s_add_u32 s36, s36, {WS_KV + 5120}
    s_mov_b32 s34, {KV_HEAD - 20*16}
    v_mul_u32_u24 v3, {VG}, v2
    v_and_b32 v4, 3, v0
    s_mov_b32 s35, {KV_HEAD}
    v_mul_lo_u32 v4, v4, s35
    v_bfe_u32 v5, v0, 2, 3
    v_mul_u32_u24 v5, {VG}, v5
    v_add3_u32 v4, v4, v5, 0
    v_mov_b32 v16, 0x3f803f80
    v_mov_b32 v17, 0x3f803f80
    v_mov_b32 v18, 0x3f803f80
    v_mov_b32 v19, 0x3f803f80
    buffer_store_dwordx4 v[16:19], v4, s[28:31], s36 offen offset:320
    """)
    qi = 0
    for t in range(5):
        a(f"""
        v_add_u32 v4, {16*t}, v1
        v_mul_u32_u24 v5, 3277, v4
        v_lshrrev_b32 v5, 16, v5
        v_lshl_add_u32 v4, v4, 4, v3
        v_mul_lo_u32 v5, v5, s34
        v_add_u32 v{8+t}, v4, v5
        """)
        for tp in range(2):
            q = TQ[qi]; qi += 1
            for k in range(2):
                s = 2*tp + k
                a(f"v_cvt_pk_bf16_f32 v{q+2*k}, v{acc(s,t)}, v{acc(s,t)+1}")
                a(f"v_cvt_pk_bf16_f32 v{q+2*k+1}, v{acc(s,t)+2}, v{acc(s,t)+3}")
            a(f"buffer_store_dwordx4 {vr(q,4)}, v{8+t}, s[28:31], s36 offen offset:{tp*VT}")
    stamp(4); dump(5)
    a("s_endpgm")
    a(f"""
    K1_epF:
    s_and_b32 s3, s15, 1
    s_lshl_b32 s3, s3, 1
    s_add_u32 s3, s3, s19
    s_mul_i32 s34, s3, 80
    s_lshl_b32 s36, s14, 12
    s_lshl_b32 s3, s18, 9
    s_add_u32 s36, s36, s3
    s_add_u32 s36, s36, {WS_AE}
    s_mov_b32 s37, 1.0
    s_mov_b32 s38, 0
    s_cmp_ge_u32 s15, 14
    s_cselect_b32 s37, -1.0, s37
    s_cselect_b32 s38, {WS_BO - WS_AE}, s38
    s_add_u32 s3, s14, s18
    s_cmp_eq_u32 s3, 0
    s_cselect_b32 s40, 0xffff, 0
    s_mov_b32 s41, 0
    v_lshlrev_b32 v3, 10, v2
    v_add_u32 v3, s38, v3
    v_mov_b32 v4, s37
    v_mov_b32 v5, 1.0
    v_cndmask_b32 v5, v4, v5, s[48:49]
    v_cndmask_b32 v6, v4, 0, s[40:41]
    v_cndmask_b32 v7, v5, 0, s[40:41]
    v_add_u32 v13, s34, v1
    """)
    qi = 0
    for t in range(5):
        a(f"""
        v_add_u32 v14, {16*t}, v13
        v_lshrrev_b32 v15, 5, v14
        v_and_b32 v14, 31, v14
        v_lshl_add_u32 v14, v14, 4, v3
        v_lshl_add_u32 v{8+t}, v15, 16, v14
        """)
        if t == 0:
            a(f"""
            v_lshlrev_b32 v14, 10, v2
            v_add_u32 v14, {10*65536}, v14
            v_cndmask_b32 v8, v8, v14, s[48:49]
            """)
        q = TQ[qi]; qi += 1
        F = [72+i for i in range(8)]
        for sp in range(2):
            for r in range(4):
                sp_r0 = (sp == 0 and r == 0)
                mreg = (7 if sp_r0 else 5) if t == 0 else (6 if sp_r0 else 4)
                a(f"v_fma_f32 v{F[4*sp+r]}, v{acc(sp+2,t)+r}, v{mreg}, v{acc(sp,t)+r}")
        for k in range(4):
            a(f"v_cvt_pk_bf16_f32 v{q+k}, v{F[2*k]}, v{F[2*k+1]}")
        a(f"buffer_store_dwordx4 {vr(q,4)}, v{8+t}, s[28:31], s36 offen")
    stamp(4); dump(5)
    if prof: a("s_mov_b64 exec, -1")
    a(f"""
    s_cmp_eq_u32 s40, 0
    s_cbranch_scc1 K1_end
    v_lshlrev_b32 v14, 2, v13
    s_mov_b32 s36, {WS_A1024}
    s_cmp_ge_u32 s15, 14
    s_cbranch_scc1 K1_epF2
    s_mov_b64 exec, 0xffff
    """)
    for t in range(5):
        a(f"buffer_store_dword v{acc(2,t)}, v14, s[28:31], s36 offen offset:{64*t}")
    a(f"""
    s_endpgm
    K1_epF2:
    s_cmp_eq_u32 s48, 0
    s_cbranch_scc1 K1_end
    s_mov_b64 exec, 1
    buffer_store_dword v{acc(2,0)}, v14, s[28:31], s36 offen offset:{320*4}
    K1_end:
    s_endpgm
    """)
    return a.text(), 208

if __name__ == "__main__":
    t, v = gen_k1()
    print(t)
```

```python
from common import *

CH = 2*KV_SUB
NBUF = 4
K2_LDS = CH*NBUF + 1024
WPART = CH//4

def gen_k2(prof=False, pbase=0, cpre=True, nofn=False, nobar=False, noexec=False, nolds=False, prio=0, vmask=True, half=False, cpf=0, wpf=0, ynt=0, wont=0, fair=1, lastbar=False, **kw):
    a = Asm()
    def stamp(i):
        if prof: a(f"s_memtime s[{60+2*i}:{61+2*i}]")
    def dump(n):
        if prof:
            a(f"""
            s_waitcnt vmcnt(0) lgkmcnt(0)
            s_memtime s[{60+2*n}:{61+2*n}]
            s_memrealtime s[82:83]
            s_mov_b64 exec, 1
            s_lshl_b32 s3, s2, 4
            s_add_u32 s3, s3, s16
            s_lshl_b32 s3, s3, 6
            s_add_u32 s3, s3, {WS_PROF + pbase}
            v_mov_b32 v1, s3
            s_waitcnt lgkmcnt(0)
            """)
            for i in range(n+1):
                a(f"v_mov_b32 v2, s{60+2*i}")
                a(f"buffer_store_dword v2, v1, s[28:31], 0 offen offset:{4*i}")
            a("v_mov_b32 v2, s80")
            a("buffer_store_dword v2, v1, s[28:31], 0 offen offset:56")
            a("v_mov_b32 v2, s82")
            a("buffer_store_dword v2, v1, s[28:31], 0 offen offset:60")
    Q1 = 4; W0 = 8; W1 = 14; CB = 20; SS = [36, 52]; P = 68; O = 76
    K1 = [92, 96]; K2 = [100, 104]; V = [108, 116]
    VKA, VKN, VVA, VVN, VKL, VVL = 124, 125, 126, 127, 128, 129
    NV = 136
    q2v = [W0+2, W0, W1+2, W1]
    def qk2(d, k2, t):
        return f"v_mfma_f32_32x32x8_bf16 {vr(d,16)}, {vr(k2+2*(t%2),2)}, {vr((W0+2) if t < 2 else (W1+2),2)}, {vr(d,16)}"
    a(f"""
    s_cmp_ge_u32 s2, 256
    s_cbranch_scc1 K2_end
    """)
    if cpre: code_prefetch(a, "K2", 2, 131)
    a(f"""
    s_load_dwordx2 s[12:13], s[0:1], 88
    v_lshrrev_b32 v1, 6, v0
    v_and_b32 v0, 63, v0
    s_and_b32 s18, s2, 7
    s_lshr_b32 s19, s2, 3
    v_readfirstlane_b32 s16, v1
    s_and_b32 s14, s19, 3
    s_lshl_b32 s3, s18, 2
    s_add_u32 s14, s14, s3
    s_lshr_b32 s15, s2, 5
    s_mul_i32 s17, s14, {KV_HEAD}
    s_add_u32 s17, s17, {WS_KV}
    v_lshlrev_b32 v{VKL}, 4, v0
    """)
    if prof: a("s_memrealtime s[80:81]")
    stamp(0)
    a(f"""
    s_mov_b32 s30, {WS_SIZE}
    s_mov_b32 s31, 0x20000
    s_cmp_ge_u32 s16, 8
    s_waitcnt lgkmcnt(0)
    s_mov_b32 s28, s12
    s_mov_b32 s29, s13
    s_cbranch_scc1 K2_bg
    """)
    a(f"""
    ; Q loads
    s_lshr_b32 s3, s16, 2
    s_lshl_b32 s20, s15, 1
    s_add_u32 s20, s20, s3
    s_mul_i32 s20, s20, 5120
    s_mul_i32 s3, s14, 81920
    s_add_u32 s20, s20, s3
    s_and_b32 s21, s16, 3
    s_lshl_b32 s3, s21, 10
    s_add_u32 s22, s20, s3
    s_lshr_b32 s3, s21, 1
    s_lshl_b32 s3, s3, 9
    s_add_u32 s23, s20, s3
    s_and_b32 s3, s21, 1
    s_lshl_b32 s3, s3, 3
    s_add_u32 s23, s23, s3
    s_add_u32 s23, s23, 4096
    v_and_b32 v1, 31, v0
    v_lshlrev_b32 v2, 4, v1
    buffer_load_dwordx4 {vr(Q1,4)}, v{VKL}, s[28:31], s22 offen
    buffer_load_dwordx2 v[{W0+2}:{W0+3}], v2, s[28:31], s23 offen
    v_lshrrev_b32 v3, 5, v0
    v_mul_u32_u24 v3, {VG}, v3
    v_add3_u32 v{VVL}, v2, v3, 0
    v_add_u32 v{VVL}, 5120, v{VVL}
    v_mov_b32 v{VKA}, v{VKL}
    v_mov_b32 v{VVA}, v{VVL}
    v_add_u32 v{VKN}, {CH}, v{VKL}
    v_add_u32 v{VVN}, {CH}, v{VVL}
    s_mov_b32 s42, -1
    s_mov_b32 s43, 0
    s_mov_b32 s45, {CH}
    s_mov_b32 s46, 0
    s_mov_b32 s47, 0
    """)
    a("s_mov_b32 s40, 0x1fffff"); a("s_mov_b32 s41, 0x1fffff")
    for i in (range(16) if vmask else range(12, 16)):
        a(f"v_mov_b32 v{V[0]+i}, 0")
    for i in range(16):
        a(f"v_mov_b32 v{O+i}, 0")
    for i in range(4, 8):
        a(f"v_mov_b32 v{P+i}, 0")
    stamp(1)
    a(f"""
    s_barrier
    """)
    stamp(2)
    a(f"""
    ds_read_b128 {vr(K1[0],4)}, v{VKA}
    ds_read_b128 {vr(K2[0],4)}, v{VKA} offset:4096
    ds_read_b128 {vr(K1[1],4)}, v{VKA} offset:1024
    {"s_mov_b64 exec, s[40:41]" if vmask else ""}
    ds_read_b128 {vr(V[0],4)}, v{VVA}
    ds_read_b128 {vr(V[0]+4,4)}, v{VVA} offset:{2*VG}
    s_mov_b64 exec, -1
    s_waitcnt vmcnt(0)
    v_cndmask_b32 v{W1+2}, v{W0+2}, 0, s[42:43]
    v_cndmask_b32 v{W1+3}, v{W0+3}, 0, s[42:43]
    v_cndmask_b32 v{W0+2}, 0, v{W0+2}, s[42:43]
    v_cndmask_b32 v{W0+3}, 0, v{W0+3}, s[42:43]
    s_waitcnt lgkmcnt(0)
    v_mfma_f32_32x32x16_bf16 {vr(SS[0],16)}, {vr(K1[0],4)}, {vr(Q1,4)}, 0
    s_nop 9
    {qk2(SS[0], K2[0], 0)}
    s_nop 15
    """)
    s0 = SS[0]
    a(f"v_max3_f32 v1, v{s0}, v{s0+1}, v{s0+2}")
    a(f"v_max3_f32 v2, v{s0+3}, v{s0+4}, v{s0+5}")
    a(f"v_max3_f32 v1, v1, v{s0+6}, v{s0+7}")
    a(f"v_max3_f32 v2, v2, v{s0+8}, v{s0+9}")
    a(f"v_max3_f32 v1, v1, v{s0+10}, v{s0+11}")
    a(f"v_max3_f32 v2, v2, v{s0+12}, v{s0+13}")
    a(f"v_max3_f32 v1, v1, v{s0+14}, v{s0+15}")
    a(f"""
    v_max_f32 v1, v1, v2
    v_mov_b32 v2, v1
    s_nop 1
    v_permlane32_swap_b32 v1, v2
    v_max_f32 v1, v1, v2
    v_sub_f32 v{CB}, 0, v1
    """)
    for i in range(1, 16):
        a(f"v_mov_b32 v{CB+i}, v{CB}")
    for i in range(16):
        a(f"v_add_f32 v{s0+i}, v{s0+i}, v{CB}")
    stamp(3)
    a("K2_loop:")
    def koff(t):
        reg = VKA if t < 8 else VKN
        t %= 8
        return reg, (t//4)*KV_SUB + (t%4)*1024
    def voff(t):
        reg = VVA if t < 8 else VVN
        t %= 8
        return reg, (t//4)*KV_SUB + (t%4)*VT
    for i in range(8):
        cur = i % 2; nxt = 1 - cur
        sc = SS[cur]; sn = SS[nxt]
        ex = lambda r: f"v_exp_f32 v{sc+r}, v{sc+r}"
        cv = lambda k: f"v_cvt_pk_bf16_f32 v{P+k}, v{sc+2*k}, v{sc+2*k+1}"
        skip = half and (i % 2 == 1)
        if not skip: a("s_waitcnt lgkmcnt(0)")
        if i == 6 and not nobar:
            a("""
            s_cmp_eq_u32 s46, 7
            s_cbranch_scc1 K2_nobar
            s_barrier
            K2_nobar:
            """)
        if fair == 1 and i % 2 == 0:
            a(f"s_setprio {3 - ((i - 6) % 8)//2}")
        if fair == 2:
            a(f"s_setprio {3 - ((i - 6) % 8) % 4}")
        if fair == 3:
            a(f"s_setprio {3 - (i % 4)}")
        if fair == 4 and i % 2 == 0:
            a(f"s_setprio {3 - i//2}")
        a(f"v_mfma_f32_32x32x16_bf16 {vr(sn,16)}, {vr(K1[nxt],4)}, {vr(Q1,4)}, {vr(CB,16)}")
        r, o = koff(i+2)
        if not nolds and not skip: a(f"ds_read_b128 {vr(K1[cur],4)}, v{r} offset:{o}")
        for k in range(4): a(ex(k))
        a(f"v_mfma_f32_32x32x16_bf16 {vr(O,16)}, {vr(V[nxt]+4,4)}, {vr(P+4,4)}, {vr(O,16)}")
        r, o = voff(i+1)
        if vmask and not skip: a("s_mov_b64 exec, s[40:41]")
        if not nolds and not skip:
            a(f"""
            ds_read_b128 {vr(V[nxt],4)}, v{r} offset:{o}
            ds_read_b128 {vr(V[nxt]+4,4)}, v{r} offset:{o+2*VG}
            """)
        if vmask and not skip: a("s_mov_b64 exec, -1")
        for k in range(4, 8): a(ex(k))
        a(cv(0)); a(cv(1))
        t1 = (i+1) % 8
        a(qk2(sn, K2[t1//4], t1%4))
        if (i+2) % 4 == 0:
            r, o = koff(i+2)
            a(f"ds_read_b128 {vr(K2[((i+2)%8)//4],4)}, v{r} offset:{o+4096}")
        a(cv(2)); a(cv(3))
        for k in range(8, 12): a(ex(k))
        a(f"v_mfma_f32_32x32x16_bf16 {vr(O,16)}, {vr(V[cur],4)}, {vr(P,4)}, {vr(O,16)}")
        for k in range(12, 16): a(ex(k))
        for k in range(4, 8): a(cv(k))
    a(f"""
    s_add_u32 s45, s45, {CH}
    s_cmp_eq_u32 s45, {CH*NBUF}
    s_cselect_b32 s45, 0, s45
    v_mov_b32 v{VKA}, v{VKN}
    v_mov_b32 v{VVA}, v{VVN}
    v_add_u32 v{VKN}, s45, v{VKL}
    v_add_u32 v{VVN}, s45, v{VVL}
    s_add_u32 s46, s46, 1
    s_cmp_lt_u32 s46, 8
    s_cbranch_scc1 K2_loop
    v_mfma_f32_32x32x16_bf16 {vr(O,16)}, {vr(V[1]+4,4)}, {vr(P+4,4)}, {vr(O,16)}
    """)
    stamp(4)
    a(f"""
    K2_fin:
    s_lshl_b32 s3, s15, 4
    s_lshl_b32 s20, s16, 1
    s_add_u32 s20, s20, s3
    s_mul_i32 s20, s20, 20480
    s_add_u32 s20, s20, {WS_O}
    s_lshr_b32 s3, s14, 1
    s_lshl_b32 s21, s3, 10
    s_and_b32 s22, s14, 1
    s_lshl_b32 s23, s22, 9
    s_add_u32 s21, s21, s23
    s_add_u32 s21, s21, s20
    s_lshl_b32 s3, s3, 8
    s_lshl_b32 s22, s22, 3
    s_add_u32 s22, s22, s3
    s_add_u32 s22, s22, s20
    s_add_u32 s22, s22, 16384
    v_and_b32 v1, 15, v0
    v_bfe_u32 v2, v0, 4, 1
    v_mul_u32_u24 v2, 20480, v2
    v_lshl_add_u32 v1, v1, 4, v2
    v_lshrrev_b32 v2, 5, v0
    v_lshl_add_u32 v2, v2, 8, v1
    s_nop 3
    v_mov_b32 v{K1[0]}, v{O+8}
    v_mov_b32 v{K1[0]+1}, v{O+8}
    v_max3_f32 v3, |v{O}|, |v{O+1}|, |v{O+2}|
    v_max3_f32 v3, v3, |v{O+3}|, |v{O+4}|
    v_permlane32_swap_b32 v{K1[0]}, v{K1[0]+1}
    v_max3_f32 v3, v3, |v{O+5}|, |v{O+6}|
    v_max3_f32 v3, v3, |v{O+7}|, |v{O+8}|
    v_cndmask_b32 v{K1[1]}, 0, v{O+9}, s[42:43]
    v_cndmask_b32 v{K1[1]+1}, 0, v{O+10}, s[42:43]
    v_cndmask_b32 v{K1[1]+2}, 0, v{O+11}, s[42:43]
    v_rcp_f32 v{K1[0]+2}, v{K1[0]+1}
    v_add_f32 v{K1[1]+3}, v{O}, v{O+1}
    v_max3_f32 v3, v3, |v{K1[1]}|, |v{K1[1]+1}|
    v_max_f32 v3, v3, |v{K1[1]+2}|
    """)
    a(f"""
    s_mov_b32 s3, {f32bits(2.0**100)}
    v_cmp_ngt_f32 vcc, s3, v3
    v_cmp_u_f32 s[24:25], v{O}, v{O+1}
    s_or_b64 vcc, vcc, s[24:25]
    v_cmp_u_f32 s[24:25], v{O+2}, v{O+3}
    s_or_b64 vcc, vcc, s[24:25]
    v_cmp_u_f32 s[24:25], v{O+4}, v{O+5}
    s_or_b64 vcc, vcc, s[24:25]
    v_cmp_u_f32 s[24:25], v{O+6}, v{O+7}
    s_or_b64 vcc, vcc, s[24:25]
    v_cmp_u_f32 s[24:25], v{O+8}, v{K1[1]}
    s_or_b64 vcc, vcc, s[24:25]
    v_cmp_u_f32 s[24:25], v{K1[1]+1}, v{K1[1]+2}
    s_or_b64 vcc, vcc, s[24:25]
    s_cmp_eq_u64 vcc, 0
    s_cbranch_scc1 K2_store
    s_cmp_eq_u32 s47, 0
    s_cbranch_scc1 K2_fallback
    K2_store:
    """)
    R = K1[0]+2
    for i in range(12):
        a(f"v_mul_f32 v{O+i}, v{O+i}, v{R}")
    for k in range(6):
        a(f"v_cvt_pk_bf16_f32 v{P+k}, v{O+2*k}, v{O+2*k+1}")
    a(f"""
    buffer_store_dwordx4 {vr(P,4)}, v2, s[28:31], s21 offen
    s_mov_b64 exec, s[42:43]
    buffer_store_dwordx2 {vr(P+4,2)}, v1, s[28:31], s22 offen
    """)
    stamp(5); dump(6)
    a("s_endpgm")
    a(f"""
    K2_fallback:
    s_mov_b32 s47, 1
    v_mov_b32 v3, 0xff800000
    s_mov_b32 s46, 0
    s_mov_b32 s20, s17
    K2_fbA:
    buffer_load_dwordx4 {vr(K2[0],4)}, v{VKL}, s[28:31], s20 offen offset:4095
    """)
    a.lines.pop()
    a(f"""
    s_add_u32 s21, s20, 4096
    buffer_load_dwordx4 {vr(K2[0],4)}, v{VKL}, s[28:31], s21 offen
    """)
    for t in range(4):
        a(f"""
        buffer_load_dwordx4 {vr(K1[0],4)}, v{VKL}, s[28:31], s20 offen offset:{t*1024}
        s_waitcnt vmcnt(0)
        v_mfma_f32_32x32x16_bf16 {vr(s0,16)}, {vr(K1[0],4)}, {vr(Q1,4)}, 0
        s_nop 9
        {qk2(s0, K2[0], t)}
        s_nop 15
        """)
        for k in range(8):
            a(f"v_max3_f32 v3, v3, v{s0+2*k}, v{s0+2*k+1}")
    a(f"""
    s_add_u32 s20, s20, {KV_SUB}
    s_add_u32 s46, s46, 1
    s_cmp_lt_u32 s46, 16
    s_cbranch_scc1 K2_fbA
    v_mov_b32 v2, v3
    s_nop 1
    v_permlane32_swap_b32 v3, v2
    v_max_f32 v3, v3, v2
    v_sub_f32 v{CB}, 0, v3
    """)
    for i in range(1, 16):
        a(f"v_mov_b32 v{CB+i}, v{CB}")
    for i in range(16):
        a(f"v_mov_b32 v{O+i}, 0")
    a(f"""
    s_mov_b32 s46, 0
    s_mov_b32 s20, s17
    K2_fbB:
    s_add_u32 s21, s20, 4096
    buffer_load_dwordx4 {vr(K2[0],4)}, v{VKL}, s[28:31], s21 offen
    """)
    for t in range(4):
        a(f"""
        buffer_load_dwordx4 {vr(K1[0],4)}, v{VKL}, s[28:31], s20 offen offset:{t*1024}
        s_add_u32 s21, s20, {t*VT}
        buffer_load_dwordx4 {vr(V[0],4)}, v{VVL}, s[28:31], s21 offen
        buffer_load_dwordx4 {vr(V[0]+4,4)}, v{VVL}, s[28:31], s21 offen offset:{2*VG}
        s_waitcnt vmcnt(0)
        v_mfma_f32_32x32x16_bf16 {vr(s0,16)}, {vr(K1[0],4)}, {vr(Q1,4)}, {vr(CB,16)}
        s_nop 9
        {qk2(s0, K2[0], t)}
        s_nop 15
        """)
        for k in range(16): a(f"v_exp_f32 v{s0+k}, v{s0+k}")
        a("s_nop 0")
        for k in range(8): a(f"v_cvt_pk_bf16_f32 v{P+k}, v{s0+2*k}, v{s0+2*k+1}")
        a(f"""
        s_nop 1
        v_mfma_f32_32x32x16_bf16 {vr(O,16)}, {vr(V[0],4)}, {vr(P,4)}, {vr(O,16)}
        v_mfma_f32_32x32x16_bf16 {vr(O,16)}, {vr(V[0]+4,4)}, {vr(P+4,4)}, {vr(O,16)}
        s_nop 7
        """)
    a(f"""
    s_add_u32 s20, s20, {KV_SUB}
    s_add_u32 s46, s46, 1
    s_cmp_lt_u32 s46, 16
    s_cbranch_scc1 K2_fbB
    s_branch K2_fin
    """)
    def dma():
        a(f"""
        s_add_u32 m0, s46, s47
        s_add_u32 s3, s45, 4096
        buffer_load_dwordx4 v{VKL}, s[28:31], s45 offen lds
        buffer_load_dwordx4 v{VKL}, s[28:31], s45 offen offset:1024 lds
        buffer_load_dwordx4 v{VKL}, s[28:31], s45 offen offset:2048 lds
        buffer_load_dwordx4 v{VKL}, s[28:31], s45 offen offset:3072 lds
        s_add_u32 m0, m0, 4096
        s_add_u32 s45, s45, {CH}
        buffer_load_dwordx4 v{VKL}, s[28:31], s3 offen lds
        s_mov_b64 exec, 0xff
        buffer_load_dwordx4 v{VKL}, s[28:31], s3 offen offset:1024 lds
        s_mov_b64 exec, -1
        s_add_u32 s47, s47, {CH}
        s_cmp_eq_u32 s47, {CH*NBUF}
        s_cselect_b32 s47, 0, s47
        """)
    ND = 6
    def wopf():
        if not wpf: return
        a(f"""
        s_lshl_b32 s3, s19, 2
        s_add_u32 s3, s3, s44
        s_mul_i32 s3, s3, {5*1280}
        s_add_u32 s3, s3, {WS_WO}
        v_min_u32 v7, 49, v0
        v_lshlrev_b32 v7, 7, v7
        buffer_load_dword v130, v7, s[28:31], s3 offen
        """)
    a(f"""
    K2_bg:
    s_sub_u32 s44, s16, 8
    s_mul_i32 s46, s44, {WPART}
    s_add_u32 s45, s17, s46
    s_mov_b32 s47, 0
    """)
    dma()
    a(f"""
    s_setprio {prio}
    s_load_dwordx4 s[4:7], s[0:1], 32
    s_load_dwordx2 s[8:9], s[0:1], 0
    s_load_dwordx2 s[32:33], s[0:1], 64
    s_mov_b32 s48, 1
    {"s_branch K2_idle0" if nofn else ""}
    s_cmp_ge_u32 s19, 24
    s_cbranch_scc1 K2_side
    s_cmp_ge_u32 s19, 11
    s_cselect_b32 s20, 1, 0
    s_mul_i32 s3, s20, 11
    s_sub_u32 s21, s19, s3
    s_lshl_b32 s3, s18, 1
    s_add_u32 s20, s20, s3
    s_cmp_lt_u32 s19, 22
    s_cbranch_scc1 K2_fn
    s_mov_b32 s20, 16
    s_sub_u32 s21, s19, 22
    s_lshl_b32 s21, s21, 3
    s_add_u32 s21, s21, s18
    s_cmp_lt_u32 s21, 11
    s_cbranch_scc1 K2_fn
    K2_idle0:
    s_waitcnt vmcnt(0)
    s_barrier
    {"s_endpgm" if nobar else ""}
    """)
    dma(); dma()
    a(f"""
    s_waitcnt vmcnt({ND}) lgkmcnt(0)
    s_barrier
    """)
    wopf()
    a(f"""
    K2_idle:
    s_waitcnt vmcnt(0)
    s_cmp_ge_u32 s48, 6
    s_cbranch_scc1 K2_idle2
    """)
    dma()
    a(f"""
    K2_idle2:
    s_barrier
    s_add_u32 s48, s48, 1
    s_cmp_lt_u32 s48, 7
    s_cbranch_scc1 K2_idle
    """)
    dump(1)
    a("s_endpgm")
    AF = 8; BF = 56; AC = 104
    a(f"""
    K2_fn:
    s_and_b32 s22, s44, 1
    s_lshr_b32 s23, s44, 1
    s_lshl_b32 s24, s20, 6
    s_lshl_b32 s3, s23, 5
    s_add_u32 s24, s24, s3
    ; s24 = t0
    v_and_b32 v1, 31, v0
    v_lshrrev_b32 v2, 5, v0
    v_add_u32 v3, s24, v1
    v_lshlrev_b32 v4, 12, v3
    v_lshl_add_u32 v4, v2, 6, v4
    s_lshl_b32 s25, s21, 16
    s_mul_i32 s3, s22, {WS_BO - WS_AE}
    s_add_u32 s25, s25, s3
    s_add_u32 s25, s25, {WS_AE}
    s_mov_b32 s26, 0
    s_lshl_b32 s27, s21, 7
    s_add_u32 s27, s27, {WS_A1024}
    v_lshlrev_b32 v5, 4, v2
    v_lshlrev_b32 v6, 31, v0
    v_lshl_add_u32 v120, v2, 6, v4
    s_waitcnt lgkmcnt(0)
    s_cmp_eq_u32 s22, 1
    s_cselect_b64 s[36:37], s[6:7], s[4:5]
    s_cselect_b64 s[34:35], 0, -1
    s_mov_b32 s38, {S*S*2}
    s_mov_b32 s39, 0x20000
    s_waitcnt vmcnt(0)
    s_barrier
    """)
    dma(); dma()
    for i in range(4):
        a(f"buffer_load_dwordx4 {vr(AC+4*i,4)}, v5, s[28:31], s27 offen offset:{32*i}")
    def fn_load(b):
        for u in range(4):
            a(f"buffer_load_dwordx4 {vr(BF+16*b+4*u,4)}, v4, s[36:39], s26 offen offset:{u*16}")
        for u in range(4):
            a(f"buffer_load_dwordx4 {vr(AF+16*b+4*u,4)}, v{VKL}, s[28:31], s25 offen offset:{u*1024}")
        a("s_add_u32 s25, s25, 4096")
        a("s_add_u32 s26, s26, 128")
    for b in range(2): fn_load(b)
    if cpf:
        a("buffer_load_dword v121, v120, s[36:39], s26 offen")
        a("buffer_load_dword v121, v120, s[36:39], s26 offen offset:256")
    a(f"""
    s_waitcnt vmcnt({16 + (2 if cpf else 0)})
    """)
    for i in range(16):
        a(f"v_xor_b32 v{AC+i}, v{AC+i}, v6")
    for i in range(16):
        a(f"v_cndmask_b32 v{AC+i}, 0, v{AC+i}, s[34:35]")
    a(f"""
    s_barrier
    K2_fnloop:
    s_waitcnt vmcnt(0)
    """)
    for b in range(2):
        for u in range(4):
            a(f"v_mfma_f32_32x32x16_bf16 {vr(AC,16)}, {vr(AF+16*b+4*u,4)}, {vr(BF+16*b+4*u,4)}, {vr(AC,16)}")
    a(f"""
    s_cmp_eq_u32 s48, 8
    s_cbranch_scc1 K2_fn3
    s_cmp_ge_u32 s48, 6
    s_cbranch_scc1 K2_fn2
    """)
    dma()
    if cpf: a("buffer_load_dword v121, v120, s[36:39], s26 offen offset:512")
    a("K2_fn2:")
    fn_load(0); fn_load(1)
    a(f"""
    s_add_u32 s48, s48, 1
    s_cmp_eq_u32 s48, 8
    s_cbranch_scc1 K2_fnloop
    s_barrier
    s_branch K2_fnloop
    K2_fn3:
    s_mov_b32 s34, 0
    s_mov_b32 s35, 0
    s_cmp_eq_u32 s21, 0
    s_cselect_b32 s34, -1, s34
    s_cmp_eq_u32 s21, 10
    s_cselect_b32 s34, -1, s34
    s_cmp_eq_u32 s22, 0
    s_cselect_b32 s34, 0, s34
    v_mul_u32_u24 v3, {YPITCH}, v3
    v_lshl_add_u32 v3, v2, 4, v3
    s_lshl_b32 s3, s21, 7
    s_mul_i32 s25, s22, {WS_YP - WS_YM}
    s_add_u32 s25, s25, s3
    s_add_u32 s25, s25, {WS_YM}
    s_nop 7
    v_cndmask_b32 v{AC}, v{AC}, 0, s[34:35]
    """)
    for i in range(4):
        a(f"buffer_store_dwordx4 {vr(AC+4*i,4)}, v3, s[28:31], s25 offen offset:{32*i}{' nt' if ynt else ''}")
    wopf()
    dump(1)
    a("s_endpgm")
    a(f"""
    K2_side:
    s_sub_u32 s20, s19, 24
    s_lshl_b32 s20, s20, 3
    s_add_u32 s20, s20, s18
    s_lshl_b32 s20, s20, 2
    s_add_u32 s20, s20, s44
    ; s20 = zw (0..255)
    v_and_b32 v1, 15, v0
    v_lshrrev_b32 v2, 4, v0
    v_lshlrev_b32 v3, 4, v1
    s_lshl_b32 s3, s20, 3
    v_add_u32 v4, s3, v2
    v_mul_u32_u24 v5, 1280, v4
    v_add_u32 v5, v5, v3
    v_lshlrev_b32 v4, 2, v4
    s_waitcnt lgkmcnt(0)
    s_mov_b32 s36, s8
    s_mov_b32 s37, s9
    s_mov_b32 s38, {S*D*2}
    s_mov_b32 s39, 0x20000
    s_mov_b32 s52, s32
    s_mov_b32 s53, s33
    s_mov_b32 s54, {D*2}
    s_mov_b32 s55, 0x20000
    s_mov_b32 s21, {4*1280}
    s_waitcnt vmcnt(0)
    s_barrier
    """)
    dma(); dma()
    GW = 8; XA = 28; XB = 48
    for q in range(5):
        a(f"buffer_load_dwordx4 {vr(GW+4*q,4)}, v3, s[52:55], 0 offen offset:{256*q}")
    for q in range(5):
        a(f"buffer_load_dwordx4 {vr(XA+4*q,4)}, v5, s[36:39], 0 offen offset:{256*q}")
    for q in range(5):
        a(f"buffer_load_dwordx4 {vr(XB+4*q,4)}, v5, s[36:39], s21 offen offset:{256*q}")
    a(f"""
    s_waitcnt vmcnt({ND+15})
    s_barrier
    s_waitcnt vmcnt(0)
    """)
    dma()
    wopf()
    a("v_mov_b32 v70, 0")
    a("v_mov_b32 v71, 0")
    for i in range(20):
        a(f"v_dot2_f32_bf16 v70, v{XA+i}, v{GW+i}, v70")
        a(f"v_dot2_f32_bf16 v71, v{XB+i}, v{GW+i}, v71")
    a("s_nop 3")
    for sh in (8, 4, 2, 1):
        a(f"""
        v_add_f32_dpp v70, v70, v70 row_ror:{sh} row_mask:0xf bank_mask:0xf
        v_add_f32_dpp v71, v71, v71 row_ror:{sh} row_mask:0xf bank_mask:0xf
        s_nop 1
        """)
    a(f"""
    v_mul_f32 v70, {f32bits(-math.log2(math.e))}, v70
    v_mul_f32 v71, {f32bits(-math.log2(math.e))}, v71
    v_exp_f32 v70, v70
    v_exp_f32 v71, v71
    s_nop 0
    v_add_f32 v70, 1.0, v70
    v_add_f32 v71, 1.0, v71
    v_rcp_f32 v70, v70
    v_rcp_f32 v71, v71
    s_mov_b32 s34, 0x00010001
    s_mov_b32 s35, 0x00010001
    s_mov_b32 s3, {WS_G}
    s_mov_b64 exec, s[34:35]
    buffer_store_dword v70, v4, s[28:31], s3 offen
    buffer_store_dword v71, v4, s[28:31], s3 offen offset:16
    s_mov_b64 exec, -1
    s_barrier
    s_mov_b32 s48, 2
    s_branch K2_idle
    """)
    a(f"""
    K2_end:
    s_endpgm
    """)
    return a.text(), NV

if __name__ == "__main__":
    print(gen_k2()[0])
```

```python
from common import *
K3_LDS = 4*3*5*1024

def gen_k3(prof=False, pbase=0, cpre=True, pre=3, **kw):
    a = Asm()
    def stamp(i):
        if prof: a(f"s_memtime s[{60+2*i}:{61+2*i}]")
    def dump(n):
        if prof:
            a(f"""
            s_waitcnt vmcnt(0) lgkmcnt(0)
            s_memtime s[{60+2*n}:{61+2*n}]
            s_memrealtime s[82:83]
            s_mov_b64 exec, 1
            s_lshl_b32 s3, s2, 3
            s_add_u32 s3, s3, s16
            s_lshl_b32 s3, s3, 6
            s_add_u32 s3, s3, {WS_PROF + pbase}
            v_mov_b32 v1, s3
            s_waitcnt lgkmcnt(0)
            """)
            for i in range(n+1):
                a(f"v_mov_b32 v2, s{60+2*i}")
                a(f"buffer_store_dword v2, v1, s[28:31], 0 offen offset:{4*i}")
            a("v_mov_b32 v2, s80")
            a("buffer_store_dword v2, v1, s[28:31], 0 offen offset:56")
            a("v_mov_b32 v2, s82")
            a("buffer_store_dword v2, v1, s[28:31], 0 offen offset:60")
    OF = 32
    WF = 112
    YR = 212
    Y2 = 232
    GR = 252
    def of(st, s): return OF + (st*4 + s)*4
    def wf(st, t): return WF + (st*5 + t)*4
    def acc(s, t): return (s*5 + t)*4
    a(f"""
    s_cmp_ge_u32 s2, 256
    s_cbranch_scc1 K3_end
    s_load_dwordx2 s[12:13], s[0:1], 88
    s_load_dwordx2 s[10:11], s[0:1], 72
    """)
    if cpre: code_prefetch(a, "K3", 4, 253)
    a(f"""
    v_lshrrev_b32 v1, 6, v0
    v_and_b32 v0, 63, v0
    s_and_b32 s18, s2, 7
    s_lshr_b32 s19, s2, 3
    v_readfirstlane_b32 s16, v1
    s_and_b32 s14, s19, 3
    s_lshl_b32 s3, s18, 2
    s_add_u32 s14, s14, s3
    s_lshr_b32 s15, s19, 2
    v_lshlrev_b32 v2, 4, v0
    v_add_u32 v3, 4096, v2
    s_mov_b32 s30, {WS_SIZE}
    s_mov_b32 s31, 0x20000
    """)
    if prof: a("s_memrealtime s[80:81]")
    stamp(0)
    a(f"""
    s_mul_i32 s17, s16, 5120
    s_mul_i32 s20, s14, {4*20480}
    s_add_u32 s20, s20, s17
    s_add_u32 s20, s20, {WS_O}
    """)
    for sl in range(4):
        a(f"""
        s_add_u32 s3, s16, {sl}
        s_and_b32 s{36+sl}, s3, 3
        s_mul_i32 s3, s{36+sl}, 20480
        s_add_u32 s{32+sl}, s20, s3
        """)
    a(f"""
    s_mul_i32 s40, s15, {5*20480}
    s_add_u32 s40, s40, s17
    s_add_u32 s40, s40, {WS_WO}
    s_add_u32 s41, s40, 20480
    s_add_u32 s42, s40, {2*20480}
    s_add_u32 s43, s40, {3*20480}
    s_add_u32 s44, s40, {4*20480}
    s_waitcnt lgkmcnt(0)
    s_mov_b32 s28, s12
    s_mov_b32 s29, s13
    """)
    def loads(st):
        r = []
        va, off = ("v2", st*1024) if st < 4 else ("v3", 0)
        for t in range(5):
            if t < 4:
                r.append(f"buffer_load_dwordx4 {vr(of(st,t),4)}, {va}, s[28:31], s{32+t} offen offset:{off}")
            r.append(f"buffer_load_dwordx4 {vr(wf(st,t),4)}, {va}, s[28:31], s{40+t} offen offset:{off}")
        return r
    for st in range(pre):
        for l in loads(st): a(l)
    a(f"""
    v_and_b32 v4, 15, v0
    v_lshrrev_b32 v5, 4, v0
    s_lshl_b32 s3, s14, 5
    s_and_b32 s21, s16, 1
    s_lshl_b32 s21, s21, 4
    s_add_u32 s3, s3, s21
    v_add_u32 v6, s3, v4
    ; v6 = s_f
    s_lshr_b32 s21, s16, 1
    s_cmp_eq_u32 s21, 1
    s_cselect_b64 s[22:23], -1, 0
    v_cmp_eq_u32 vcc, 0, v6
    s_and_b64 s[24:25], vcc, s[22:23]
    s_andn2_b64 s[26:27], s[22:23], vcc
    v_mov_b32 v7, 1024
    v_cndmask_b32 v7, v6, v7, s[24:25]
    ; v7 = t'
    v_sub_u32 v8, 2048, v6
    v_cndmask_b32 v8, v7, v8, s[26:27]
    s_cmp_ge_u32 s15, 4
    s_cselect_b64 s[22:23], -1, 0
    s_xor_b64 s[26:27], s[26:27], s[22:23]
    v_mov_b32 v9, -1.0
    v_mov_b32 v10, 1.0
    v_cndmask_b32 v24, v9, v10, s[26:27]
    v_mul_u32_u24 v9, {YPITCH}, v7
    s_mov_b32 s51, {WS_YM}
    s_mov_b32 s52, {WS_YP}
    s_mul_i32 s21, s15, 80
    v_lshl_add_u32 v10, v5, 2, s21
    s_mov_b32 s46, 0
    s_mov_b32 s47, 4
    s_cmp_ge_u32 s15, 4
    s_cselect_b32 s46, {637*4}, s46
    s_cselect_b32 s47, -4, s47
    v_add_u32 v9, s46, v9
    v_mad_i32_i24 v12, v10, s47, v9
    s_mul_i32 s48, s47, 16
    v_add_u32 v13, s48, v12
    v_add_u32 v14, s48, v13
    v_add_u32 v15, s48, v14
    v_add_u32 v16, s48, v15
    v_lshlrev_b32 v17, 2, v8
    s_mov_b32 s53, {WS_G}
    v_mul_u32_u24 v18, 1280, v8
    v_lshl_add_u32 v19, v10, 1, v18
    v_and_b32 v11, 1, v5
    v_mul_u32_u24 v11, 24, v11
    v_add_u32 v18, v19, v11
    s_mov_b32 s4, s10
    s_mov_b32 s5, s11
    s_mov_b32 s6, {S*D*2}
    s_mov_b32 s7, 0x20000
    """)
    for sl in range(1, 4):
        a(f"""
        s_mul_i32 s3, s{36+sl}, 15360
        s_add_u32 s3, s3, {(sl-1)*5120}
        v_add_u32 v{20+sl}, s3, v2
        """)
    a(f"""
    s_mul_i32 s3, s16, 15360
    v_add_u32 v20, s3, v2
    """)
    yl = []
    for t in range(5):
        yl.append(f"buffer_load_dwordx4 {vr(YR+4*t,4)}, v{12+t}, s[28:31], s51 offen")
        yl.append(f"buffer_load_dwordx4 {vr(Y2+4*t,4)}, v{12+t}, s[28:31], s52 offen")
    yl.append(f"buffer_load_dword v{GR}, v17, s[28:31], s53 offen")
    stamp(1)
    later = [loads(st) for st in range(pre, 5)] + [yl]
    issued = pre*9
    for st in range(5):
        a(f"s_waitcnt vmcnt({issued - 9*(st+1)})")
        if st == 0: stamp(2)
        grp = later.pop(0) if later else []
        ms = []
        for s in (1, 2, 3, 0):
            for t in range(5):
                c = "0" if st == 0 else ar(acc(s,t),4)
                ms.append(f"v_mfma_f32_16x16x32_bf16 {ar(acc(s,t),4)}, {vr(wf(st,t),4)}, {vr(of(st,s),4)}, {c}")
        for i, m in enumerate(ms):
            a(m)
            if grp and i % 2 == 1: a(grp.pop(0)); issued += 1
            if st == 4 and i >= 9 and i < 19:
                j = i - 9
                sl, t = 1 + j//5, j % 5
                a(f"ds_write_b128 v{20+sl}, {ar(acc(sl,t),4)} offset:{t*1024}")
        for l in grp: a(l); issued += 1
    assert not later
    stamp(3)
    for t in range(5):
        a(f"ds_write_b128 v23, {ar(acc(3,t),4)} offset:{t*1024}")
    a("s_nop 2")
    for i in range(20):
        a(f"v_accvgpr_read_b32 v{OF+i}, a{i}")
    a(f"""
    s_waitcnt lgkmcnt(0)
    s_barrier
    """)
    RD = OF + 20
    for sl in range(3):
        for t in range(5):
            a(f"ds_read_b128 {vr(RD+(sl*5+t)*4,4)}, v20 offset:{sl*5120+t*1024}")
    a("s_waitcnt vmcnt(0)")
    for i in range(20):
        a(f"v_fma_f32 v{YR+i}, v{Y2+i}, v24, v{YR+i}")
    for sl in range(3):
        a(f"s_waitcnt lgkmcnt({(2-sl)*5})")
        for i in range(10):
            a(f"v_pk_add_f32 {vr(OF+2*i,2)}, {vr(OF+2*i,2)}, {vr(RD+sl*20+2*i,2)}")
    a(f"""
    s_cmp_ge_u32 s15, 4
    s_cbranch_scc1 K3_mir
    """)
    for mir in (False, True):
        if mir: a("K3_mir:")
        for t in range(5):
            for r in range(4):
                y = YR + 4*t + (3-r if mir else r)
                a(f"v_sub_f32 v{OF+4*t+r}, v{OF+4*t+r}, v{y}")
            for r in range(4):
                y = YR + 4*t + (3-r if mir else r)
                a(f"v_fma_f32 v{OF+4*t+r}, v{OF+4*t+r}, v{GR}, v{y}")
        if not mir: a("s_branch K3_st")
    a("K3_st:")
    for k in range(10):
        a(f"v_cvt_pk_bf16_f32 v{RD+k}, v{OF+2*k}, v{OF+2*k+1}")
    a(f"""
    buffer_store_dwordx2 {vr(RD+8,2)}, v19, s[4:7], 0 offen offset:128
    v_permlane16_swap_b32 v{RD}, v{RD+2}
    v_permlane16_swap_b32 v{RD+1}, v{RD+3}
    v_permlane16_swap_b32 v{RD+4}, v{RD+6}
    v_permlane16_swap_b32 v{RD+5}, v{RD+7}
    s_nop 1
    buffer_store_dwordx4 {vr(RD,4)}, v18, s[4:7], 0 offen
    buffer_store_dwordx4 {vr(RD+4,4)}, v18, s[4:7], 0 offen offset:64
    """)
    stamp(4); dump(5)
    a(f"""
    K3_end:
    s_endpgm
    """)
    return a.text(), 256 + 80, 256

if __name__ == "__main__":
    print(gen_k3()[0])
```
